```python
import torch

def _softmax(x, axis=-1):
    return torch.softmax(x, dim=axis)
def _gelu(x):
    return torch.nn.functional.gelu(x, approximate="tanh")
def _silu(x):
    return torch.nn.functional.silu(x)
def _sigmoid(x):
    return torch.sigmoid(x)
def _layernorm(x, axis=-1, eps=1e-5):
    m = x.mean(dim=axis, keepdim=True)
    v = x.var(dim=axis, keepdim=True, unbiased=False)
    return (x - m) / torch.sqrt(v + eps)
def _scatter_add(tgt, idx, src, axis=0):
    return tgt.clone().index_add_(axis, idx, src)
def _segment_sum(src, seg, n):
    out = torch.zeros((n,) + src.shape[1:], dtype=src.dtype)
    return out.index_add_(0, seg, src)
def _pad(x, pw):
    flat = tuple(v for pair in reversed(pw) for v in pair)
    return torch.nn.functional.pad(x, flat)

kernel_name = 'sequential_preLN__grouped_kv_mqa__mixer_token_mlp__prompt'

def setup_inputs():

    _w = (lambda a: (lambda t: t.to(torch.bfloat16) if t.is_floating_point() else t)(torch.as_tensor(a)))
    def _A_setup():
        B, S, D, H = 1, 2048, 640, 32
        Dh = D // H
        return {
            "x": _w((lambda *s: torch.randn(*s, dtype=torch.bfloat16) * 0.05)(B, S, D)),
            "wq": _w((lambda *s: torch.randn(*s, dtype=torch.bfloat16) * 0.05)(D, H * Dh)),
            "wk": _w((lambda *s: torch.randn(*s, dtype=torch.bfloat16) * 0.05)(D, Dh)),
            "wv": _w((lambda *s: torch.randn(*s, dtype=torch.bfloat16) * 0.05)(D, Dh)),
            "wo": _w((lambda *s: torch.randn(*s, dtype=torch.bfloat16) * 0.05)(H * Dh, D)),
        }
    _A_in = _A_setup()

    def _B_setup():
        B, S, D, F = 1, 2048, 640, 1536
        return {
            "x": _w((lambda *s: torch.randn(*s, dtype=torch.bfloat16) * 0.05)(B, S, D)),
            "w1": _w((lambda *s: torch.randn(*s, dtype=torch.bfloat16) * 1.6)(S, F) * (S ** -0.5)),
            "b1": _w((lambda *s: torch.randn(*s, dtype=torch.bfloat16) * 1.6)(F) * 0.02),
            "w2": _w((lambda *s: torch.randn(*s, dtype=torch.bfloat16) * 1.6)(F, S) * (F ** -0.5)),
            "b2": _w((lambda *s: torch.randn(*s, dtype=torch.bfloat16) * 0.8)(S) * 0.02),
        }
    _B_in = _B_setup()

    return {
        "A_x": _A_in["x"],
        "A_wq": _A_in["wq"],
        "A_wk": _A_in["wk"],
        "A_wv": _A_in["wv"],
        "A_wo": _A_in["wo"],
        "B_x": _B_in["x"],
        "B_w1": _B_in["w1"],
        "B_b1": _B_in["b1"],
        "B_w2": _B_in["w2"],
        "B_b2": _B_in["b2"],
    }

def reference(A_x, A_wq, A_wk, A_wv, A_wo, B_x, B_w1, B_b1, B_w2, B_b2):
    def _A_ref(x, wq, wk, wv, wo):
        B, S, D = x.shape
        H = 32
        Dh = D // H
        q = (lambda x, *d: x.permute(*d))((x @ wq).reshape(B, S, H, Dh), 0, 2, 1, 3)
        k = x @ wk
        v = x @ wv
        scores = torch.einsum("bhqd,bkd->bhqk", q, k) * (Dh ** -0.5)
        p = _softmax(scores, axis=-1)
        o = torch.einsum("bhqk,bkd->bhqd", p, v)
        return (lambda x, *d: x.permute(*d))(o, 0, 2, 1, 3).reshape(B, S, H * Dh) @ wo

    def _B_ref(x, w1, b1, w2, b2):
        B, S, D = x.shape
        h = _layernorm(x, axis=-1)
        u = torch.einsum("bsd,sf->bdf", h, w1) + b1
        u = _gelu(u)
        y = torch.einsum("bdf,fs->bds", u, w2) + b2
        return (lambda x, *d: x.permute(*d))(y, 0, 2, 1)

    x = A_x
    h = x + _A_ref(_layernorm(x, axis=-1), A_wq, A_wk, A_wv, A_wo)
    h2 = h + _B_ref(_layernorm(h, axis=-1), B_w1, B_b1, B_w2, B_b2)
    return h2
```

```python
import re

REG_RE = re.compile(r"^(-|abs\()?([vas])(?:(\d+)|\[(\d+):(\d+)\])\)?$")


def regs_of(op):
    op = op.strip()
    if op in ("vcc", "exec", "m0", "scc"):
        return {op}
    if op in ("vcc_lo", "vcc_hi"):
        return {"vcc"}
    if op in ("exec_lo", "exec_hi"):
        return {"exec"}
    m = REG_RE.match(op)
    if not m:
        return set()
    k = m.group(2)
    if m.group(3) is not None:
        return {k + m.group(3)}
    return {k + str(i) for i in range(int(m.group(4)), int(m.group(5)) + 1)}


TRANS = ("v_exp_f32", "v_log_f32", "v_rcp_f32", "v_rsq_f32", "v_sqrt_f32", "v_sin_f32", "v_cos_f32")


class Ins:
    __slots__ = ("text", "mn", "ops", "kind", "wr", "rd", "passes", "srcA", "srcB", "srcC", "dst", "stdata")

    def __init__(self, text):
        self.text = text
        t = text.split(";")[0].strip()
        self.kind = "other"
        self.wr = set()
        self.rd = set()
        self.passes = 0
        self.srcA = self.srcB = self.srcC = self.dst = self.stdata = set()
        if not t or t.endswith(":") or t.startswith("."):
            self.mn = ""
            self.ops = []
            self.kind = "label" if t.endswith(":") else "none"
            return
        p = t.split(None, 1)
        self.mn = mn = p[0]
        rest = p[1] if len(p) > 1 else ""
        ops = [o.strip() for o in rest.split(",")]
        ops2 = []
        for o in ops:
            ops2.append(o.split()[0] if o else o)
        self.ops = ops = ops2
        R = [regs_of(o) for o in ops]
        allr = lambda lst: set().union(*lst) if lst else set()
        if mn.startswith("v_mfma") or mn.startswith("v_smfmac"):
            self.kind = "mfma"
            if "32x32x4_2b" in mn:
                self.passes = 16
            elif "32x32" in mn:
                self.passes = 8
            elif "16x16" in mn:
                self.passes = 4
            else:
                raise ValueError(mn)
            self.dst = R[0]
            self.srcA, self.srcB = R[1], R[2]
            if mn.startswith("v_smfmac"):
                self.srcC = R[0]
                self.srcB = R[2] | R[3]
            else:
                self.srcC = R[3]
            self.wr = R[0]
            self.rd = self.srcA | self.srcB | self.srcC
        elif mn.startswith("v_"):
            self.kind = "valu"
            if mn.startswith("v_permlane") and "swap" in mn:
                self.wr = R[0] | R[1]
                self.rd = R[0] | R[1]
            elif mn.startswith("v_cmp"):
                self.wr = R[0]
                self.rd = allr(R[1:])
            elif "_co_" in mn:
                self.wr = R[0] | R[1]
                self.rd = allr(R[2:])
            else:
                self.wr = R[0]
                self.rd = allr(R[1:])
                if mn.startswith("v_fmac") or mn.startswith("v_dot2c") or "dpp" in text or "sdwa" in mn:
                    self.rd |= R[0]
                if mn.startswith("v_cndmask") and len(ops) == 3:
                    self.rd |= {"vcc"}
        elif mn.startswith("ds_"):
            self.kind = "ds"
            if mn.startswith("ds_read") or mn.startswith("ds_bperm") or mn.startswith("ds_swz"):
                self.wr = R[0]
                self.rd = allr(R[1:])
            else:
                self.rd = allr(R)
        elif mn.startswith("buffer_") or mn.startswith("global_"):
            self.kind = "vmem"
            lds = re.search(r"\blds\b", rest) is not None or "_lds_" in mn
            if "load" in mn and not lds:
                self.wr = R[0]
                self.rd = allr(R[1:])
                if "d16" in mn:
                    self.rd |= R[0]
            else:
                self.rd = allr(R)
                if lds:
                    self.rd |= {"m0"}
                if "store" in mn and ("x4" in mn or "x3" in mn):
                    self.stdata = R[0] if mn.startswith("buffer_") else R[1]
        elif mn.startswith("s_"):
            self.kind = "salu"
            if mn.startswith("s_load") or mn.startswith("s_memtime") or mn.startswith("s_memrealtime"):
                self.kind = "smem"
                self.wr = R[0]
                self.rd = allr(R[1:])
            elif mn.startswith("s_cmp") or mn.startswith("s_bitcmp"):
                self.rd = allr(R)
            elif mn in ("s_nop", "s_waitcnt", "s_barrier", "s_sleep", "s_endpgm", "s_setprio") or mn.startswith("s_branch") or mn.startswith("s_cbranch"):
                pass
            else:
                self.wr = R[0]
                self.rd = allr(R[1:])
                if "saveexec" in mn:
                    self.wr |= {"exec"}

    def states(self):
        if self.kind in ("label", "none"):
            return 0
        if self.mn == "s_nop":
            return int(self.ops[0]) + 1
        return 1


def need_between(p, c):
    n = 0
    isv = lambda s: {r for r in s if r[0] in "va" and r != "vcc"}
    iss = lambda s: {r for r in s if r[0] == "s" or r == "vcc"}
    if p.kind == "valu":
        wv = isv(p.wr)
        ws = iss(p.wr)
        if c.kind == "mfma" and wv & c.rd:
            n = max(n, 2)
        if c.kind == "valu":
            if p.mn.replace("_e32", "").replace("_e64", "") in TRANS and wv & c.rd:
                n = max(n, 1)
            if c.mn.startswith("v_permlane") and wv & c.rd:
                n = max(n, 2)
            if "dpp" in c.text and wv & c.rd:
                n = max(n, 2)
            if (c.mn.startswith("v_readfirstlane") or c.mn.startswith("v_readlane")) and wv & c.rd:
                n = max(n, 1)
            if ws & c.rd:
                n = max(n, 4 if c.mn.startswith("v_readlane") or c.mn.startswith("v_writelane") else 2)
            if ("sdwa" in p.mn or "op_sel" in p.text and not p.mn.startswith("v_pk")) and wv & (c.rd | c.wr):
                n = max(n, 1)
        if c.kind == "vmem" and ws & c.rd:
            n = max(n, 5)
        if c.kind in ("salu", "smem") and ws & c.rd:
            n = max(n, 1)
    elif p.kind == "mfma":
        tab_ab = {4: 8, 8: 12, 16: 20}[p.passes]
        tab_c = {4: 6, 8: 10, 16: 18}[p.passes]
        if c.kind == "mfma":
            if p.dst & (c.srcA | c.srcB):
                n = max(n, tab_ab)
            if p.dst & c.srcC and not (p.dst == c.srcC and p.passes == c.passes):
                n = max(n, tab_c)
            elif p.dst & c.dst and not (p.dst == c.dst and p.passes == c.passes):
                n = max(n, tab_c)
        elif c.kind in ("valu", "vmem", "ds"):
            if p.dst & (c.rd | c.wr):
                n = max(n, tab_ab)
            if c.kind == "valu" and p.srcC & c.wr:
                n = max(n, {4: 3, 8: 7, 16: 15}[p.passes])
    elif p.kind == "salu":
        if "m0" in p.wr and "m0" in c.rd and c.kind == "vmem":
            n = max(n, 1)
    elif p.kind == "vmem":
        if p.stdata & c.wr:
            n = max(n, 2 if c.kind == "valu" else 1)
    return n


class Asm:
    def __init__(self):
        self.ins = []
        self.vm = []
        self.lg = []
        self.smem = False
        self.nlab = 0
        self.nops_added = 0

    def __call__(self, text, tag=None):
        for line in text.split("\n"):
            line = line.strip()
            if not line:
                continue
            i = Ins(line)
            self.ins.append(i)
            if i.kind == "vmem":
                self.vm.append(tag)
                assert len(self.vm) <= 61, line
            elif i.kind == "ds":
                self.lg.append(tag)
            elif i.kind == "smem":
                self.smem = True

    def label(self, name):
        self.ins.append(Ins(name + ":"))

    def newlabel(self, base):
        self.nlab += 1
        return f"L_{base}_{self.nlab}"

    def comment(self, t):
        self.ins.append(Ins("; " + t))

    def _count(self, q, tag):
        tags = tag if isinstance(tag, (list, tuple, set)) and not isinstance(tag, str) else [tag]
        if isinstance(tag, tuple):
            tags = [tag]
        last = -1
        for k, t in enumerate(q):
            if t in tags:
                last = k
        return last

    def wait_text(self, vm=None, lg=None):
        parts = []
        if vm is not None:
            if vm == "all":
                if self.vm:
                    parts.append("vmcnt(0)")
                self.vm = []
            else:
                last = self._count(self.vm, vm)
                if last >= 0:
                    n = len(self.vm) - 1 - last
                    parts.append(f"vmcnt({n})")
                    self.vm = self.vm[last + 1:]
        if lg is not None:
            if lg == "all" or self.smem:
                if self.lg or self.smem:
                    parts.append("lgkmcnt(0)")
                self.lg = []
                self.smem = False
            else:
                last = self._count(self.lg, lg)
                if last >= 0:
                    n = len(self.lg) - 1 - last
                    if n > 15:
                        n = 15
                    parts.append(f"lgkmcnt({n})")
                    self.lg = self.lg[len(self.lg) - n:] if n else []
        if not parts:
            return None
        return "s_waitcnt " + " ".join(parts)

    def wait(self, vm=None, lg=None):
        t = self.wait_text(vm, lg)
        if t:
            self.ins.append(Ins(t))

    def snapshot(self):
        return (list(self.vm), list(self.lg), self.smem)

    def restore(self, s):
        self.vm, self.lg, self.smem = list(s[0]), list(s[1]), s[2]

    def finish(self, verbose=False):
        out = []
        for c in self.ins:
            if c.kind not in ("label", "none"):
                need = 0
                dist = 0
                for p in reversed(out):
                    if p.mn == "s_branch" or p.mn == "s_endpgm":
                        break
                    if p.kind not in ("label", "none"):
                        n = need_between(p, c)
                        if n > dist:
                            need = max(need, n - dist)
                    dist += p.states()
                    if dist >= 21:
                        break
                if need:
                    self.nops_added += need
                    if verbose:
                        print("pad", need, "before", c.text)
                    while need > 0:
                        k = min(need, 16)
                        out.append(Ins(f"s_nop {k-1}"))
                        need -= k
            out.append(c)
        lines = []
        for i in out:
            if i.kind == "label":
                lines.append(i.text)
            else:
                lines.append("  " + i.text)
        return "\n".join(lines)
```

```python
import sys, os, math, struct
sys.path.insert(0, os.path.dirname(os.path.abspath(__file__)))
from asmlib import Asm

NAME = "sequential_preLN__grouped_kv_mqa__mixer_token_mlp__prompt"
STAMP = "--stamp" in sys.argv
FORCE_FB = "--forcefb" in sys.argv
OUT = [x for x in sys.argv[1:] if not x.startswith("--")]
OUT = OUT[0] if OUT else f"cdna_kernels/{NAME}.s"


def f2u(x):
    return struct.unpack("<I", struct.pack("<f", x))[0]


KV_BASE = 0
KV_BLK = 6144
BIG = 0x100000
O_BASE = BIG
O_BLK = 81920
ST_BASE = O_BASE + 32 * O_BLK
HN_BASE = ST_BASE + 131072
U_BASE = HN_BASE + 2621440
BIG_END = U_BASE + 1966080
assert BIG_END - BIG == 256 * 28672
STAMP_BASE = 0xA00000
WS_BYTES = 0x1000000
OOB = 0x7F000000

L_X = 0
L_WKV = 81920
L_WQ = 107520
L_Q = 148480
L_WO = 0
L_RED = 81920
L_FLAG = 163840 - 64
L_MAXB = 155648
L_W1A = 102400
L_W1B = 0

sX, sWQ, sWKV, sWO, sW1, sW2, sOUT, sWS = (f"s[{b}:{b+3}]" for b in (32, 36, 40, 44, 48, 52, 56, 60))
S_W, S_XCD, S_IDX, S_TB, S_J, S_D, S_F = "s64", "s65", "s66", "s67", "s68", "s69", "s70"
S_T0, S_T1, S_T2, S_T3 = "s71", "s72", "s73", "s74"
S_RETRY = "s75"
S_MASK = "s76"
S_KVB = "s77"
S_B0, S_B1, S_B2 = "s78", "s79", "s30"
S_FL = 80
S_CNT = "s88"
S_LDSW = "s89"
S_C0, S_C1 = "s90", "s91"
S_FBI = "s31"
S_KV0 = "s92"
S_B3 = "s93"

V_L, V_L16, V_T16, V_G = "v0", "v1", "v2", "v3"
XR = 4
WOA = 14
V_IDX = "v24"
V_L8 = "v25"
V_VA = "v26"
V_RW = 27
V_RR = "v30"
V_ST = "v31"

a = Asm()
late = []


def vr(b, n=1):
    return f"v{b}" if n == 1 else f"v[{b}:{b+n-1}]"


def ar(b, n=1):
    return f"a{b}" if n == 1 else f"a[{b}:{b+n-1}]"


def rr(spec, n):
    k, b = spec
    return f"{k}{b}" if n == 1 else f"{k}[{b}:{b+n-1}]"


nstamp = [0]
stamp_names = []


def stamp(name):
    if not STAMP:
        return
    i = nstamp[0]
    nstamp[0] += 1
    stamp_names.append(name)
    a("s_memrealtime s[96:97]")
    a.wait(lg="all")
    a(f"v_writelane_b32 {V_ST}, s96, {i}")


def srd(dst, ptr, nbytes):
    b = int(dst[2:dst.index(":")])
    a(f"s_mov_b32 s{b}, s{ptr}")
    a(f"s_mov_b32 s{b+1}, s{ptr+1}")
    a(f"s_mov_b32 s{b+2}, {nbytes}")
    a(f"s_mov_b32 s{b+3}, 0x20000")


def dma(vaddr, s, soff_base, soff_add, lds_base, lds_add, tag, flags=""):
    ins = []
    ins.append(f"s_add_u32 m0, {lds_base}, {lds_add}" if lds_base else f"s_mov_b32 m0, {lds_add}")
    ins.append(f"s_add_u32 {S_T0}, {soff_base}, {soff_add}" if soff_base else f"s_mov_b32 {S_T0}, {soff_add}")
    ins.append((f"buffer_load_dwordx4 {vaddr}, {s}, {S_T0} offen {flags} lds", tag))
    return ins


def emit(lst):
    for x in lst:
        if isinstance(x, tuple):
            a(x[0], tag=x[1])
        elif callable(x):
            x()
        else:
            a(x)


def check_batch(regs, tmp, reissue, name):
    lb = a.newlabel("chk" + name)
    lr = a.newlabel("rty" + name)
    items = [lambda: a.label(lb)]
    regs = list(regs)
    if len(regs) == 1:
        items.append(f"v_cmp_eq_u32 vcc, -1, v{regs[0]}")
    else:
        if len(regs) == 2:
            items.append(f"v_max_u32 v{tmp}, v{regs[0]}, v{regs[1]}")
            rest = []
        else:
            items.append(f"v_max3_u32 v{tmp}, v{regs[0]}, v{regs[1]}, v{regs[2]}")
            rest = regs[3:]
        while len(rest) >= 2:
            items.append(f"v_max3_u32 v{tmp}, v{tmp}, v{rest[0]}, v{rest[1]}")
            rest = rest[2:]
        if rest:
            items.append(f"v_max_u32 v{tmp}, v{tmp}, v{rest[0]}")
        items.append(f"v_cmp_eq_u32 vcc, -1, v{tmp}")
    items.append(f"s_cbranch_vccnz {lr}")

    def ool():
        a.label(lr)
        a(f"s_sub_u32 {S_RETRY}, {S_RETRY}, 1")
        a("s_cbranch_scc1 L_exit")
        a("s_sleep 2")
        emit(reissue)
        a("s_waitcnt vmcnt(0)")
        a.vm = []
        a(f"s_branch {lb}")
    late.append(ool)
    return items


def xreduce(regs, tmp):
    for sw in ("v_permlane16_swap_b32", "v_permlane32_swap_b32"):
        for i, r in enumerate(regs):
            a(f"v_mov_b32 v{tmp+i}, v{r}")
        for i, r in enumerate(regs):
            a(f"{sw} v{r}, v{tmp+i}")
        for i, r in enumerate(regs):
            a(f"v_add_f32 v{r}, v{r}, v{tmp+i}")


a("s_cmp_ge_u32 s2, 256")
a("s_cbranch_scc1 L_exit")
a("s_load_dwordx16 s[4:19], s[0:1], 0")
a("s_load_dwordx8 s[20:27], s[0:1], 64")
a("s_load_dwordx2 s[28:29], s[0:1], 96")
a("v_lshrrev_b32 v1, 6, v0")
a("v_and_b32 v0, 63, v0")
a(f"v_readfirstlane_b32 {S_W}, v1")
a(f"v_lshlrev_b32 {V_L16}, 4, v0")
a(f"v_and_b32 {V_T16}, 15, v0")
a(f"v_lshrrev_b32 {V_G}, 4, v0")
a(f"s_and_b32 {S_XCD}, s2, 7")
a(f"s_lshr_b32 {S_IDX}, s2, 3")
a(f"s_lshr_b32 {S_T0}, {S_IDX}, 3")
a(f"s_lshl_b32 {S_TB}, {S_XCD}, 2")
a(f"s_add_u32 {S_TB}, {S_TB}, {S_T0}")
a(f"s_and_b32 {S_J}, {S_IDX}, 7")
a(f"s_mov_b32 {S_MASK}, 0xffff0000")
a(f"s_mov_b32 {S_RETRY}, 400000")
XA = 76
a("v_lshrrev_b32 v60, 3, v0")
a("v_and_b32 v61, 7, v0")
a(f"v_xor_b32 v62, v61, {V_G}")
a("v_mul_u32_u24 v63, 1280, v60")
a(f"v_lshl_add_u32 v{XA}, v62, 4, v63")
a("v_xor_b32 v62, 4, v62")
a(f"v_lshl_add_u32 v{XA+1}, v62, 4, v63")
a(f"v_add_u32 v{XA+1}, {8*1280}, v{XA+1}")
a(f"s_lshl_b32 {S_B0}, {S_TB}, 2")
a(f"s_add_u32 {S_B0}, {S_B0}, {S_W}")
a(f"s_mul_i32 {S_B0}, {S_B0}, {16*1280}")
a(f"s_mul_i32 {S_LDSW}, {S_W}, 20480")
a.wait(lg="all")
if STAMP:
    a(f"v_mov_b32 {V_ST}, 0")
stamp("start")
srd(sWS, 28, WS_BYTES)
snap = a.snapshot()
a(f"s_cmp_lg_u32 {S_IDX}, 2")
a("s_cbranch_scc1 L_noprefill")
a(f"s_lshl_b32 {S_T1}, {S_XCD}, 2")
a(f"s_add_u32 {S_T1}, {S_T1}, {S_W}")
a(f"s_mul_i32 {S_T1}, {S_T1}, {KV_BLK}")
for r in range(4):
    a(f"v_mov_b32 v{64+r}, -1")
for i in range(3):
    a(f"buffer_store_dwordx4 v[64:67], {V_L16}, {sWS}, {S_T1} offen offset:{i*1024} sc1")
a(f"s_add_u32 {S_T1}, {S_T1}, 3072")
a(f"s_mov_b32 {S_T2}, 0x3f803f80")
for i in range(3):
    d = 96 + 4 * i
    a(f"v_add_u32 v60, {64*i}, v0")
    a("v_mul_u32_u24 v61, 2731, v60")
    a("v_lshrrev_b32 v61, 16, v61")
    a("v_mul_u32_u24 v61, 24, v61")
    a("v_sub_u32 v60, v60, v61")
    a("v_and_b32 v60, 0x1b, v60")
    a(f"v_mov_b32 v{d}, -1")
    a(f"v_mov_b32 v61, {S_T2}")
    a("v_cmp_eq_u32 vcc, 18, v60")
    a(f"v_cndmask_b32 v{d}, v{d}, v61, vcc")
    a("v_cmp_ne_u32 vcc, 19, v60")
    a(f"v_cndmask_b32 v{d}, 0, v{d}, vcc")
    for r in range(1, 4):
        a(f"v_mov_b32 v{d+r}, v{d}")
    a(f"buffer_store_dwordx4 v[{d}:{d+3}], {V_L16}, {sWS}, {S_T1} offen offset:{i*1024} sc1")
a.label("L_noprefill")
a.restore(snap)
srd(sX, 4, 2048 * 1280)
for s2 in range(10):
    for b in range(2):
        emit(dma(f"v{XA+b}", sX, S_B0, s2 * 128, S_LDSW, (2 * s2 + b) * 1024, ("x", s2)))
srd(sWQ, 6, 640 * 1280)
a(f"s_cmp_eq_u32 {S_J}, 0")
a("s_cselect_b32 s40, s8, s10")
a("s_cselect_b32 s41, s9, s11")
a(f"s_cmp_lt_u32 {S_J}, 2")
a("s_cselect_b32 s42, 25600, 0")
a("s_mov_b32 s43, 0x20000")

a(f"s_lshl_b32 {S_T1}, {S_W}, 10")
for m in range(6):
    emit(dma(V_L16, sWKV, S_T1, m * 4096, S_T1, L_WKV + m * 4096, "wkv"))
emit(dma(V_L16, sWKV, None, 24576, None, L_WKV + 24576, "wkv"))

WQA = 78
for i5 in range(5):
    a(f"v_add_u32 v60, {64*i5}, v0")
    a("v_mul_u32_u24 v61, 6554, v60")
    a("v_lshrrev_b32 v61, 16, v61")
    a("v_mul_u32_u24 v62, 10, v61")
    a("v_sub_u32 v60, v60, v62")
    a("v_lshlrev_b32 v60, 4, v60")
    a("v_and_b32 v62, 3, v61")
    a("v_bfe_u32 v63, v61, 2, 2")
    a("v_lshrrev_b32 v61, 4, v61")
    a("v_lshl_add_u32 v64, v63, 3, v62")
    a("v_lshl_add_u32 v64, v61, 2, v64")
    a("v_mul_u32_u24 v64, 1280, v64")
    a(f"v_add_u32 v{WQA+i5}, v64, v60")
    a("v_lshrrev_b32 v65, 1, v63")
    a("v_and_b32 v66, 1, v63")
    a("v_mul_u32_u24 v64, 20, v65")
    a("v_lshl_add_u32 v64, v61, 3, v64")
    a("v_lshl_add_u32 v64, v66, 2, v64")
    a("v_add_u32 v64, v64, v62")
    a("v_mul_u32_u24 v64, 1280, v64")
    a(f"v_add_u32 v{WOA+i5}, v64, v60")
    a("v_mul_u32_u24 v64, 80, v61")
    a("v_mad_u32_u24 v64, v65, 40, v64")
    a("v_lshrrev_b32 v67, 1, v62")
    a("v_mad_u32_u24 v64, v67, 20, v64")
    a("v_lshl_add_u32 v64, v66, 1, v64")
    a("v_and_b32 v67, 1, v62")
    a("v_add3_u32 v64, v64, v67, 16")
    a("v_mul_u32_u24 v64, 1280, v64")
    a(f"v_add_u32 v{WOA+5+i5}, v64, v60")
a(f"s_mul_i32 {S_B1}, {S_J}, 160")
a(f"s_mul_i32 {S_T1}, {S_W}, {32*1280}")
a(f"s_add_u32 {S_B1}, {S_B1}, {S_T1}")
a(f"s_mul_i32 {S_B2}, {S_W}, 5120")
for st in range(2):
    for i5 in range(5):
        emit(dma(f"v{WQA+i5}", sWQ, S_B1, st * 4 * 32 * 1280, S_B2, L_WQ + st * 20480 + i5 * 1024, ("wq", st)))
srd(sWO, 12, 640 * 1280)
srd(sW1, 16, 2048 * 3072)
srd(sW2, 20, 1536 * 4096)
srd(sOUT, 24, 2048 * 1280)
a(f"s_min_u32 {S_T1}, {S_IDX}, 29")
a(f"s_mul_i32 {S_T2}, {S_T1}, 52")
a(f"s_lshr_b32 {S_T2}, {S_T2}, 8")
a(f"s_mul_i32 {S_T3}, {S_T2}, 5")
a(f"s_sub_u32 {S_T1}, {S_T1}, {S_T3}")
a(f"s_and_b32 {S_T3}, {S_XCD}, 1")
a(f"s_mul_i32 {S_T3}, {S_T3}, 5")
a(f"s_add_u32 {S_D}, {S_T1}, {S_T3}")
a(f"s_lshr_b32 {S_T3}, {S_XCD}, 1")
a(f"s_mul_i32 {S_T3}, {S_T3}, 6")
a(f"s_add_u32 {S_F}, {S_T2}, {S_T3}")

XRD = 83
XRS = 85
V_TRA, V_TRB, V_KVR = "v90", "v91", "v92"
QW = 124
QR = 129
a(f"v_lshrrev_b32 v60, 1, {V_T16}")
a(f"v_lshrrev_b32 v61, 3, {V_T16}")
a(f"v_and_b32 v62, 7, {V_T16}")
a("v_lshlrev_b32 v61, 10, v61")
a("v_lshl_add_u32 v61, v62, 7, v61")
a(f"v_add_u32 v61, {S_LDSW}, v61")
a(f"v_xor_b32 v62, {V_G}, v60")
a(f"v_lshl_add_u32 v{XRD}, v62, 4, v61")
a("v_xor_b32 v62, 4, v62")
a(f"v_lshl_add_u32 v{XRD+1}, v62, 4, v61")
a(f"s_mul_i32 {S_T1}, {S_J}, 160")
a(f"v_lshlrev_b32 v63, 3, {V_G}")
a(f"v_add_u32 v63, {S_T1}, v63")
for ct in range(5):
    a(f"v_add_u32 v64, {32*ct}, v63")
    a("v_lshrrev_b32 v65, 7, v64")
    a("v_bfe_u32 v66, v64, 4, 3")
    a("v_xor_b32 v66, v66, v60")
    a("v_lshl_add_u32 v65, v65, 11, v61")
    a("v_lshl_add_u32 v65, v66, 4, v65")
    a("v_and_b32 v64, 8, v64")
    a(f"v_add_u32 v{XRS+ct}, v65, v64")
a("v_lshrrev_b32 v60, 2, v0")
a("v_and_b32 v61, 3, v0")
a("v_mul_u32_u24 v62, 160, v60")
a(f"v_lshl_add_u32 {V_TRB}, v61, 3, v62")
a(f"v_add_u32 {V_TRA}, {L_WQ}, {V_TRB}")
a("v_and_b32 v62, 3, v60")
a(f"v_lshl_add_u32 v62, {V_G}, 3, v62")
a("v_mul_u32_u24 v62, 40, v62")
a("v_lshl_add_u32 v62, v61, 3, v62")
a(f"v_add_u32 {V_KVR}, {L_WKV}, v62")
a(f"s_and_b32 {S_T1}, {S_W}, 1")
a(f"s_lshl_b32 {S_T1}, {S_T1}, 4")
a(f"v_add_u32 v60, {S_T1}, {V_T16}")
a(f"s_lshr_b32 {S_T1}, {S_W}, 1")
a(f"s_lshl_b32 {S_T1}, {S_T1}, 10")
a(f"s_add_u32 {S_T1}, {S_T1}, {L_Q}")
a(f"v_lshlrev_b32 v61, 4, v60")
a(f"v_add_u32 v61, {S_T1}, v61")
a(f"v_lshlrev_b32 v62, 3, v60")
a(f"v_add_u32 v62, {S_T1}, v62")
a(f"v_add_u32 v62, 8192, v62")
for ct in range(5):
    a(f"v_add_u32 v63, {4*ct}, {V_G}")
    a("v_mul_u32_u24 v64, 52, v63")
    a("v_lshrrev_b32 v64, 8, v64")
    a("v_mul_u32_u24 v65, 5, v64")
    a("v_sub_u32 v63, v63, v65")
    a("v_lshl_add_u32 v65, v64, 11, v61")
    a("v_lshrrev_b32 v66, 1, v63")
    a("v_lshl_add_u32 v65, v66, 9, v65")
    a("v_and_b32 v66, 1, v63")
    a("v_lshl_add_u32 v65, v66, 3, v65")
    a("v_lshl_add_u32 v66, v64, 8, v62")
    a("v_cmp_eq_u32 vcc, 4, v63")
    a(f"v_cndmask_b32 v{QW+ct}, v65, v66, vcc")
a(f"v_lshlrev_b32 {V_L8}, 3, v0")
for sl in range(4):
    a(f"s_xor_b32 {S_T1}, {S_W}, {sl}")
    a(f"s_and_b32 {S_T2}, {S_T1}, 1")
    a(f"s_lshr_b32 {S_T1}, {S_T1}, 1")
    a(f"s_lshl_b32 {S_T2}, {S_T2}, 10")
    a(f"s_add_u32 {S_T2}, {S_T2}, {L_Q}")
    a(f"s_lshl_b32 {S_T3}, {S_T1}, 12")
    a(f"s_add_u32 {S_T3}, {S_T3}, {S_T2}")
    a(f"v_add_u32 v{QR+sl}, {S_T3}, {V_L16}")
    a(f"s_lshl_b32 {S_T3}, {S_T1}, 9")
    a(f"s_add_u32 {S_T3}, {S_T3}, {S_T2}")
    a(f"s_add_u32 {S_T3}, {S_T3}, 8192")
    a(f"v_add_u32 v{QR+4+sl}, {S_T3}, {V_L8}")
a(f"v_mov_b32 {V_IDX}, 0xdddddddd")
a("v_and_b32 v60, 31, v0")
a("v_min_u32 v60, 23, v60")
a("v_lshrrev_b32 v61, 5, v0")
a("v_mul_u32_u24 v61, 384, v61")
a("v_lshl_add_u32 v60, v60, 4, v61")
a(f"v_add_u32 {V_VA}, 3072, v60")
for sl in range(1, 4):
    a(f"s_xor_b32 {S_T1}, {S_W}, {sl}")
    a(f"s_mul_i32 {S_T1}, {S_T1}, 18432")
    a(f"s_add_u32 {S_T1}, {S_T1}, {L_RED + (sl-1)*6144}")
    a(f"v_add_u32 v{V_RW+sl-1}, {S_T1}, {V_L16}")
a(f"s_mul_i32 {S_T1}, {S_W}, 18432")
a(f"s_add_u32 {S_T1}, {S_T1}, {L_RED}")
a(f"v_add_u32 {V_RR}, {S_T1}, {V_L16}")
a(f"s_lshl_b32 {S_KV0}, {S_XCD}, 2")
a(f"s_add_u32 {S_KV0}, {S_KV0}, {S_W}")
for r in range(96):
    a(f"v_accvgpr_write_b32 a{r}, 0")

XF = 152
S1, S2 = 68, 70
for r in range(4):
    a(f"v_mov_b32 v{S1+r}, 0")


def stats(sig):
    for r in range(4):
        t = 60 + 2 * (r & 1)
        R = XF + 4 * sig + r
        a(f"v_lshlrev_b32 v{t}, 16, v{R}")
        a(f"v_and_b32 v{t+1}, {S_MASK}, v{R}")
        a(f"v_pk_add_f32 {vr(S1,2)}, {vr(S1,2)}, {vr(t,2)}")
        a(f"v_pk_fma_f32 {vr(S2,2)}, {vr(t,2)}, {vr(t,2)}, {vr(S2,2)}")


for s2 in range(10):
    a.wait(vm=("x", s2))
    if s2 == 0:
        stamp("x0")
        snap = a.snapshot()
        a(f"s_cmp_lg_u32 {S_IDX}, 2")
        a("s_cbranch_scc1 L_nosignal")
        a("s_barrier")
        a(f"s_cmp_lg_u32 {S_W}, 0")
        a("s_cbranch_scc1 L_nosignal")
        a(f"s_lshl_b32 {S_T1}, {S_XCD}, 2")
        a(f"v_mov_b32 v60, {S_T1}")
        a("v_mov_b32 v61, 1")
        a("s_mov_b64 exec, 1")
        a("global_store_dword v60, v61, s[26:27] sc1")
        a("s_mov_b64 exec, -1")
        a.label("L_nosignal")
        a.restore(snap)
    for p in range(2):
        a(f"ds_read_b128 {vr(XF+4*(2*s2+p),4)}, v{XRD+p} offset:{s2*2048}", tag=("xf", s2))
    if s2 == 9:
        for ct in range(5):
            a(f"ds_read_b64 {vr(XR+2*ct,2)}, v{XRS+ct}", tag="xr")
    if s2:
        a.wait(lg=("xf", s2 - 1))
        stats(2 * s2 - 2)
        stats(2 * s2 - 1)
a.wait(lg="all")
a(f"s_load_dwordx8 s[{S_FL}:{S_FL+7}], s[26:27], 0")
for st in range(2, 5):
    for i5 in range(5):
        emit(dma(f"v{WQA+i5}", sWQ, S_B1, st * 4 * 32 * 1280, S_LDSW, (st - 2) * 5120 + i5 * 1024, ("wq", st)))
stats(18)
stats(19)
a(f"v_add_f32 v{S1}, v{S1}, v{S1+1}")
a(f"v_add_f32 v{S1+1}, v{S2}, v{S2+1}")
xreduce([S1, S1 + 1], 60)
a(f"v_mul_f32 v60, {f2u(1/640):#x}, v{S1}")
a(f"v_mul_f32 v61, {f2u(1/640):#x}, v{S1+1}")
a("v_fma_f32 v61, -v60, v60, v61")
a("v_max_f32 v61, 0, v61")
a(f"v_add_f32 v61, {f2u(1e-5):#x}, v61")
a(f"v_rsq_f32 v{S1}, v61")
a(f"v_mul_f32 v{S1+1}, v60, v{S1}")
a(f"v_sub_f32 v{S1+1}, 0, v{S1+1}")
stamp("stats")
for R in range(XF, XF + 80):
    t = 60 + 2 * (R & 1)
    a(f"v_lshlrev_b32 v{t}, 16, v{R}")
    a(f"v_and_b32 v{t+1}, {S_MASK}, v{R}")
    a(f"v_pk_fma_f32 {vr(t,2)}, {vr(t,2)}, {vr(S1,2)}, {vr(S1,2)} op_sel:[0,0,1] op_sel_hi:[1,0,1]")
    a(f"v_cvt_pk_bf16_f32 v{R}, v{t}, v{t+1}")
a.wait(lg="all")
for i in range(1, 8):
    a(f"s_and_b32 s{S_FL}, s{S_FL}, s{S_FL+i}")
a(f"s_cmp_eq_u32 s{S_FL}, 1")
a("s_cbranch_scc0 L_spin1")
a.label("L_spin1_done")


def spin1():
    a.label("L_spin1")
    a(f"s_sub_u32 {S_RETRY}, {S_RETRY}, 1")
    a("s_cbranch_scc1 L_exit")
    a("v_and_b32 v60, 7, v0")
    a("v_lshlrev_b32 v60, 2, v60")
    a("global_load_dword v61, v60, s[26:27] sc1")
    a("s_waitcnt vmcnt(0)")
    a.vm = []
    a("v_cmp_ne_u32 vcc, 1, v61")
    a("s_cbranch_vccz L_spin1_done")
    a("s_sleep 4")
    a("s_branch L_spin1")


late.append(spin1)
stamp("norm")
a.wait(vm=("wq", 0))
a("s_barrier")

WB = 136
KACC = 52


def kv_role(isk):
    def rd(sig):
        for ct in range(2):
            for q in range(2):
                a(f"ds_read_b64_tr_b16 {ar(WB+8*(sig%8)+4*ct+2*q,2)}, {V_KVR} offset:{(32*sig+4*q)*40+32*ct}", tag=("kw", sig))
    for sig in range(3):
        rd(sig)
    for sig in range(20):
        if sig + 3 < 20:
            rd(sig + 3)
        a.wait(lg=("kw", sig))
        for ct in range(2):
            w = ar(WB + 8 * (sig % 8) + 4 * ct, 4)
            x = vr(XF + 4 * sig, 4)
            c = "0" if sig == 0 else vr(KACC + 4 * ct, 4)
            A, B = (w, x) if isk else (x, w)
            a(f"v_mfma_f32_16x16x32_bf16 {vr(KACC+4*ct,4)}, {A}, {B}, {c}")
    a(f"s_mul_i32 {S_T1}, {S_TB}, {KV_BLK}")
    a(f"v_mov_b32 v72, {OOB}")
    a(f"v_and_b32 v73, 1, {V_G}")
    a(f"v_lshrrev_b32 v74, 1, {V_G}")
    if isk:
        a(f"s_lshr_b32 {S_T2}, {S_W}, 1")
        a(f"s_lshl_b32 {S_T2}, {S_T2}, 10")
        a(f"s_and_b32 {S_T3}, {S_W}, 1")
        a(f"s_lshl_b32 {S_T3}, {S_T3}, 8")
        a(f"s_add_u32 {S_T2}, {S_T2}, {S_T3}")
        a("v_lshlrev_b32 v74, 9, v74")
        a(f"v_lshl_add_u32 v74, {V_T16}, 4, v74")
        a(f"v_add_u32 v74, {S_T2}, v74")
        a("v_cmp_eq_u32 vcc, 0, v73")
        a("v_cndmask_b32 v74, v72, v74, vcc")
        a(f"s_lshl_b32 {S_T2}, {S_W}, 7")
        a(f"v_add_u32 v75, {S_T2}, {V_L8}")
        a(f"v_cmp_eq_u32 vcc, 0, {V_G}")
        a("v_cndmask_b32 v75, v72, v75, vcc")
    else:
        a(f"s_mul_i32 {S_T2}, {S_W}, 768")
        a(f"s_add_u32 {S_T2}, {S_T2}, 3072")
        a("v_mul_u32_u24 v74, 384, v74")
        a(f"v_add_u32 v74, {S_T2}, v74")
        a(f"v_and_b32 v75, 1, {V_T16}")
        a(f"v_lshrrev_b32 v93, 1, {V_T16}")
        a("v_lshl_add_u32 v75, v93, 2, v75")
        a("v_add_u32 v75, 16, v75")
        a("v_lshl_add_u32 v75, v75, 4, v74")
        a(f"v_lshl_add_u32 v74, {V_T16}, 4, v74")
        a("v_cmp_eq_u32 vcc, 0, v73")
        a("v_cndmask_b32 v74, v72, v74, vcc")
        a("v_cndmask_b32 v75, v72, v75, vcc")
        a(f"v_cmp_gt_u32 vcc, 4, {V_T16}")
        a("v_cndmask_b32 v75, v72, v75, vcc")
    for ct in range(2):
        a(f"v_cvt_pk_bf16_f32 v{60+4*ct}, v{KACC+4*ct}, v{KACC+4*ct+1}")
        a(f"v_cvt_pk_bf16_f32 v{61+4*ct}, v{KACC+4*ct+2}, v{KACC+4*ct+3}")
    for ct in range(2):
        if ct == 0 or not isk:
            a(f"v_permlane16_swap_b32 v{60+4*ct}, v{62+4*ct}")
            a(f"v_permlane16_swap_b32 v{61+4*ct}, v{63+4*ct}")
    for ct in range(2):
        a(f"v_min_u32 v{60+4*ct}, -2, v{60+4*ct}")
    a(f"buffer_store_dwordx4 v[60:63], v74, {sWS}, {S_T1} offen sc1")
    if isk:
        a(f"buffer_store_dwordx2 v[64:65], v75, {sWS}, {S_T1} offen offset:2048 sc1")
    else:
        a(f"buffer_store_dwordx4 v[64:67], v75, {sWS}, {S_T1} offen sc1")


snap = a.snapshot()
a(f"s_cmp_gt_u32 {S_J}, 1")
a("s_cbranch_scc1 L_nokv")
a(f"s_cmp_eq_u32 {S_J}, 1")
a("s_cbranch_scc1 L_vrole")
kv_role(True)
a("s_branch L_nokv")
a.label("L_vrole")
a.restore(snap)
kv_role(False)
a.label("L_nokv")
a("s_nop 1")
a.restore(snap)
stamp("kv")

KVB = (96, 124)


def kv_loads(buf, it):
    b = KVB[buf]
    L = [f"s_add_u32 {S_T0}, {S_KV0}, {4*it}", f"s_and_b32 {S_T0}, {S_T0}, 31", f"s_mul_i32 {S_KVB}, {S_T0}, {KV_BLK}"]
    return L, kv_loads_only(buf, it)


def kv_loads_only(buf, it):
    b = KVB[buf]
    t = ("kv", it)
    L = [(f"buffer_load_dwordx2 {vr(b+8,2)}, {V_L8}, {sWS}, {S_KVB} offen offset:2048 sc1", t)]
    for kt in range(2):
        L.append((f"buffer_load_dwordx4 {vr(b+4*kt,4)}, {V_L16}, {sWS}, {S_KVB} offen offset:{1024*kt} sc1", t))
    for kg in range(4):
        L.append((f"buffer_load_dwordx4 {vr(b+10+4*kg,4)}, {V_VA}, {sWS}, {S_KVB} offen offset:{768*kg} sc1", t))
    return L


def kv_check(buf, it, tmp):
    b = KVB[buf]
    return check_batch([b, b + 4, b + 8, b + 10, b + 14, b + 18, b + 22], tmp, kv_loads_only(buf, it), f"kv{it}")


QACC = 32


def wq_read(sig):
    st, wv = sig // 4, sig % 4
    L = []
    for ct in range(5):
        for q in range(2):
            if st < 2:
                ad, off = V_TRA, sig * 5120
            elif wv < 3:
                ad, off = V_TRB, wv * 20480 + (st - 2) * 5120
            else:
                ad, off = "v93", (st - 2) * 5120
            L.append((f"ds_read_b64_tr_b16 {ar(WB+20*(sig%6)+4*ct+2*q,2)}, {ad} offset:{off+q*2560+ct*32}", ("wf", sig)))
    return L


a(f"v_add_u32 v93, {3*20480}, {V_TRB}")
emit(wq_read(0))
for sig in range(20):
    nxt = []
    if sig + 1 < 20:
        if (sig + 1) % 4 == 0:
            st = (sig + 1) // 4
            if st == 4:
                pre, ld = kv_loads(0, 0)
                emit(pre)
                emit(ld)
            a.wait(vm=("wq", st))
            a("s_barrier")
        nxt = wq_read(sig + 1)
    a.wait(lg=("wf", sig))
    for ct in range(5):
        c = "0" if sig == 0 else vr(QACC + 4 * ct, 4)
        a(f"v_mfma_f32_16x16x32_bf16 {vr(QACC+4*ct,4)}, {ar(WB+20*(sig%6)+4*ct,4)}, {vr(XF+4*sig,4)}, {c}")
        emit(nxt[2 * ct:2 * ct + 2])
OV = 152
for r in range(0, 32, 2):
    a(f"v_mov_b64 {vr(OV+r,2)}, 0")
QS = math.log2(math.e) / math.sqrt(20.0)
a(f"s_mov_b32 {S_C0}, {f2u(QS):#x}")
a(f"s_mov_b32 {S_C1}, {f2u(QS):#x}")
for ct in range(5):
    b = QACC + 4 * ct
    a(f"v_pk_mul_f32 {vr(b,2)}, {vr(b,2)}, s[90:91]")
    a(f"v_pk_mul_f32 {vr(b+2,2)}, {vr(b+2,2)}, s[90:91]")
    a(f"v_cvt_pk_bf16_f32 v{b}, v{b}, v{b+1}")
    a(f"v_cvt_pk_bf16_f32 v{b+1}, v{b+2}, v{b+3}")
    a(f"ds_write_b64 v{QW+ct}, {vr(b,2)}")
a.wait(lg="all")
a("s_barrier")
QA = 96
for sl in (1, 2, 3, 0):
    a(f"ds_read_b64 {ar(QA+10*sl+8,2)}, v{QR+4+sl}", tag=("q", sl))
    a(f"ds_read_b128 {ar(QA+10*sl,4)}, v{QR+sl}", tag=("q", sl))
    a(f"ds_read_b128 {ar(QA+10*sl+4,4)}, v{QR+sl} offset:2048", tag=("q", sl))
a.wait(vm=("kv", 0))
emit(kv_check(0, 0, 60))
a.wait(lg="all")
stamp("q")

SB = (32, 64)
ORDER = (1, 2, 3, 0)
RCV = 184


def oacc(sl, tile):
    return ("v", OV + 16 * tile) if sl == 0 else ("a", 32 * (sl - 1) + 16 * tile)


def unit_of(u):
    it, r = divmod(u, 8)
    return it, ORDER[r // 2], r & 1


def M4(u, sbuf):
    it, sl, kt = unit_of(u)
    return f"v_mfma_f32_32x32x4_2b_bf16 {vr(sbuf,32)}, {vr(KVB[it&1]+8,2)}, {ar(QA+10*sl+8,2)}, 0 cbsz:1 abid:{kt}"


def M16(u, sbuf, tile):
    it, sl, kt = unit_of(u)
    d = vr(sbuf + 16 * tile, 16)
    return f"v_mfma_f32_32x32x16_bf16 {d}, {vr(KVB[it&1]+4*kt,4)}, {ar(QA+10*sl+4*tile,4)}, {d}"


def SM(u, sbuf, k):
    it, sl, kt = unit_of(u)
    tile, half = k >> 1, k & 1
    return f"v_smfmac_f32_32x32x32_bf16 {rr(oacc(sl,tile),16)}, {vr(KVB[it&1]+10+4*(2*kt+half),4)}, {vr(sbuf+8*k,8)}, {V_IDX}"


side = {}


def put(u, slot, items):
    side.setdefault((u, slot), []).extend(items)


SMS = ("p3", "s0", "s1", "s2")
free_slots = [(u, s) for u in range(64) for s in SMS]
used = set()


def take(u0, n=1):
    for us in free_slots:
        if us[0] >= u0 and us not in used:
            used.add(us)
            return us
    raise RuntimeError("no slot")


for it in range(7):
    pre, ld = kv_loads((it + 1) & 1, it + 1)
    u = 8 * it
    used.add((u, "p3"))
    put(u, "p3", pre[:2])
    put(u, "s0", pre[2:])
    for k, x in enumerate(ld):
        put(*take(u), [x])
    used.add((u + 6, "s2"))
    put(u + 6, "s2", [lambda it=it: a.wait(vm=("kv", it + 1)),
                      lambda it=it: emit(kv_check((it + 1) & 1, it + 1, 150))])
put(1, "a", ["v_mov_b64 v[252:253], -1"])
put(1, "b", ["v_mov_b64 v[254:255], -1"])
put(0, "a", [f"s_mul_i32 {S_B0}, s2, 28672"])
put(0, "b", [f"s_mul_i32 {S_T1}, {S_W}, 7168"])
put(1, "p3", [f"s_add_u32 {S_B0}, {S_B0}, {S_T1}"])
for i in range(7):
    put(*take(2), [f"s_add_u32 {S_T0}, {S_B0}, {BIG + i*1024}",
                   (f"buffer_store_dwordx4 v[252:255], {V_L16}, {sWS}, {S_T0} offen sc1", "pf")])
used.add((18, "p3"))


def arrive():
    assert "pf" not in a.vm
    sn = a.snapshot()
    a("s_barrier")
    a(f"s_cmp_lg_u32 {S_W}, 0")
    a("s_cbranch_scc1 L_noarrive")
    a("v_mov_b32 v252, 128")
    a("v_mov_b32 v253, 1")
    a("s_mov_b64 exec, 1")
    a("global_atomic_add v252, v253, s[26:27]")
    a("s_mov_b64 exec, -1")
    a.label("L_noarrive")
    a.restore(sn)


put(18, "p3", [arrive])
put(8, "a", [f"s_mul_i32 {S_B1}, {S_J}, 160"])
put(8, "b", [f"s_mul_i32 {S_T1}, {S_W}, {40*1280}"])
put(9, "a", [f"s_add_u32 {S_B1}, {S_B1}, {S_T1}"])
for i in range(4):
    for i5 in range(5):
        put(*take(10 + 8 * i), dma(f"v{WOA+i5}", sWO, S_B1, i * 160 * 1280, S_B2, L_WO + i * 20480 + i5 * 1024, "wo"))
put(48, "a", [f"s_load_dword {S_CNT}, s[26:27], 128"])
put(52, "a", [lambda: a.wait(lg="all")])


def red_write(sl, tile, i):
    k, b = oacc(sl, tile)
    return (f"ds_write_b128 v{V_RW+sl-1}, {k}[{b+4*i}:{b+4*i+3}] offset:{tile*3072+i*1024}", "rw")


def red_read(sl, tile, i):
    return (f"ds_read_b128 {vr(RCV+24*(sl-1)+12*tile+4*i,4)}, {V_RR} offset:{(sl-1)*6144+tile*3072+i*1024}", ("rr", sl))


for sl in (1, 2, 3):
    u = 56 + 2 * sl
    for (slot, tile, i) in (("p3", 0, 0), ("s0", 0, 1), ("s1", 0, 2), ("a", 1, 0), ("b", 1, 1), ("s2", 1, 2)):
        put(u, slot, [red_write(sl, tile, i)])
put(63, "p3", [lambda: a.wait(lg="all"), "s_barrier"])
rds = [red_read(sl, t, i) for sl in (1, 2, 3) for t in range(2) for i in range(3)]
put(63, "p3", rds[0:6])
put(63, "s0", rds[6:12])
put(63, "s1", rds[12:18])

a(M4(0, SB[0]))
a(M16(0, SB[0], 0))
a(M16(0, SB[0], 1))
for u in range(64):
    A, B = SB[u & 1], SB[(u + 1) & 1]
    e = iter(range(32))

    def ex(n):
        for _ in range(n):
            k = next(e)
            a(f"v_exp_f32 v{A+k}, v{A+k}")

    def sd(slot):
        emit(side.pop((u, slot), []))
    last = u == 63
    ex(2)
    if u:
        a(SM(u - 1, B, 3))
    sd("p3")
    ex(3)
    if not last:
        a(M4(u + 1, B))
    ex(8)
    a(SM(u, A, 0))
    sd("s0")
    ex(5)
    a(SM(u, A, 1))
    sd("s1")
    ex(3)
    if not last:
        a(M16(u + 1, B, 0))
    sd("a")
    ex(3)
    if not last:
        a(M16(u + 1, B, 1))
    sd("b")
    ex(3)
    a(SM(u, A, 2))
    sd("s2")
    ex(5)
assert not side, side.keys()
a.wait(lg=("rr", 2))
for r in range(0, 4, 2):
    a(f"v_pk_add_f32 {vr(RCV+r,2)}, {vr(RCV+r,2)}, {vr(RCV+24+r,2)}")
a(SM(63, SB[1], 3))
for r in range(4, 24, 2):
    a(f"v_pk_add_f32 {vr(RCV+r,2)}, {vr(RCV+r,2)}, {vr(RCV+24+r,2)}")
a.label("L_attn_sum")
a.wait(lg="all")
for r in range(0, 24, 2):
    a(f"v_pk_add_f32 {vr(RCV+r,2)}, {vr(RCV+r,2)}, {vr(RCV+48+r,2)}")
for t in range(2):
    for r in range(0, 12, 2):
        a(f"v_pk_add_f32 {vr(OV+16*t+r,2)}, {vr(OV+16*t+r,2)}, {vr(RCV+12*t+r,2)}")
stamp("attn")
LO, HI = (127 - 60) << 23, (127 + 60) << 23
a(f"v_rcp_f32 v32, v{OV+10}")
a(f"v_rcp_f32 v34, v{OV+26}")
a(f"v_subrev_u32 v36, {LO:#x}, v{OV+10}")
a(f"v_subrev_u32 v37, {LO:#x}, v{OV+26}")
a("v_max_u32 v36, v36, v37")
a(f"v_cmp_lt_u32 vcc, {HI-LO:#x}, v36")
for t in range(2):
    for r in range(0, 10, 2):
        a(f"v_pk_mul_f32 {vr(OV+16*t+r,2)}, {vr(OV+16*t+r,2)}, {vr(32+2*t,2)} op_sel_hi:[1,0]")
for t in range(2):
    for r in range(4):
        a(f"v_cvt_pk_bf16_f32 v{40+4*t+r}, v{OV+16*t+2*r}, v{OV+16*t+2*r+1}")
    a(f"v_cvt_pk_bf16_f32 v{48+t}, v{OV+16*t+8}, v{OV+16*t+9}")
for r in (40, 44, 48):
    a(f"v_min_u32 v{r}, -2, v{r}")
a("s_cmp_lg_u64 vcc, 0")
a(f"s_cselect_b32 {S_T2}, 1, 0")
if FORCE_FB:
    a(f"s_mov_b32 {S_T2}, 1")
a(f"s_andn2_b32 {S_T2}, {S_T2}, {S_FBI}")
a(f"s_cmp_eq_u32 {S_CNT}, 256")
a("s_cbranch_scc0 L_spin2")
a.label("L_spin2_done")


def spin2():
    a.label("L_spin2")
    a(f"s_sub_u32 {S_RETRY}, {S_RETRY}, 1")
    a("s_cbranch_scc1 L_exit")
    a("v_mov_b32 v36, 128")
    a("global_load_dword v37, v36, s[26:27] sc1")
    a("s_waitcnt vmcnt(0)")
    a.vm = []
    a(f"v_readfirstlane_b32 {S_CNT}, v37")
    a("s_nop 1")
    a(f"s_cmp_eq_u32 {S_CNT}, 256")
    a("s_cbranch_scc1 L_spin2_done")
    a("s_sleep 4")
    a("s_branch L_spin2")


late.append(spin2)
a(f"s_mul_i32 {S_B0}, {S_TB}, {O_BLK}")
a(f"s_add_u32 {S_B0}, {S_B0}, {O_BASE}")
a(f"s_and_b32 {S_T0}, {S_W}, 1")
a(f"s_lshr_b32 {S_T1}, {S_W}, 1")
a(f"s_lshl_b32 {S_T3}, {S_J}, 1")
a(f"s_add_u32 {S_T1}, {S_T1}, {S_T3}")
a(f"s_lshl_b32 {S_T0}, {S_T0}, 4")
a(f"s_add_u32 {S_T0}, {S_T0}, {S_T1}")
a(f"s_lshl_b32 {S_T1}, {S_T0}, 9")
a(f"s_lshl_b32 {S_T0}, {S_T0}, 11")
a(f"s_add_u32 {S_T0}, {S_T0}, {S_B0}")
a(f"s_add_u32 {S_T1}, {S_T1}, {S_B0}")
a(f"s_add_u32 {S_T1}, {S_T1}, 65536")
a(f"s_cmp_lg_u32 {S_T2}, 0")
a("s_cbranch_scc1 L_nopub")
a(f"buffer_store_dwordx4 v[40:43], {V_L16}, {sWS}, {S_T0} offen sc1", tag="opub")
a(f"buffer_store_dwordx4 v[44:47], {V_L16}, {sWS}, {S_T0} offen offset:1024 sc1", tag="opub")
a(f"buffer_store_dwordx2 v[48:49], {V_L8}, {sWS}, {S_T1} offen sc1", tag="opub")
a.label("L_nopub")
a(f"s_lshl_b32 {S_T0}, {S_W}, 2")
a(f"s_add_u32 {S_T0}, {S_T0}, {L_FLAG}")
a(f"v_mov_b32 v36, {S_T0}")
a(f"v_mov_b32 v37, {S_T2}")
a("ds_write_b32 v36, v37")
a(f"v_mov_b32 v36, {L_FLAG}")
a.wait(lg="all")
a("s_barrier")
a("ds_read_b128 v[52:55], v36")
a.wait(lg="all")
a("v_or3_b32 v52, v52, v53, v54")
a("v_or_b32 v52, v52, v55")
a("v_cmp_ne_u32 vcc, 0, v52")
a("s_cbranch_vccnz L_fallback")


def fallback():
    MX = RCV
    a.label("L_fallback")
    a("s_waitcnt vmcnt(0) lgkmcnt(0)")
    a.vm = []
    a.lg = []
    a(f"s_mov_b32 {S_FBI}, 1")
    for k in range(8):
        a(f"v_mov_b32 v{MX+k}, 0xff800000")
    for ps in range(2):
        a(f"s_mov_b32 {S_T3}, 0")
        a.label(f"L_fb{ps}")
        a(f"s_add_u32 {S_T0}, {S_KV0}, {S_T3}")
        a(f"s_and_b32 {S_T0}, {S_T0}, 31")
        a(f"s_mul_i32 {S_KVB}, {S_T0}, {KV_BLK}")
        a("s_nop 15")
        emit(kv_loads_only(0, 0))
        a.wait(vm="all")
        for r in range(8):
            sl = ORDER[r // 2]
            S = SB[0]
            a(M4(r, S))
            a(M16(r, S, 0))
            a(M16(r, S, 1))
            if ps == 0:
                for t in range(2):
                    m = MX + 2 * sl + t
                    for k in range(0, 16, 2):
                        a(f"v_max3_f32 v{m}, v{m}, v{S+16*t+k}, v{S+16*t+k+1}")
            else:
                for k in range(32):
                    a(f"v_sub_f32 v{S+k}, v{S+k}, v{MX+2*sl+(k>>4)}")
                for k in range(32):
                    a(f"v_exp_f32 v{S+k}, v{S+k}")
                for k in range(4):
                    a(SM(r, S, k))
        a(f"s_add_u32 {S_T3}, {S_T3}, 4")
        a(f"s_cmp_lt_u32 {S_T3}, 32")
        a(f"s_cbranch_scc1 L_fb{ps}")
        if ps == 0:
            for k in range(8):
                a(f"v_mov_b32 v64, v{MX+k}")
                a(f"v_permlane32_swap_b32 v{MX+k}, v64")
                a(f"v_max_f32 v{MX+k}, v{MX+k}, v64")
            a("v_and_b32 v64, 31, v0")
            a("v_lshlrev_b32 v64, 2, v64")
            a(f"s_lshl_b32 {S_T1}, {S_W}, 10")
            for sl in range(4):
                a(f"s_xor_b32 {S_T0}, {S_W}, {sl}")
                a(f"s_lshl_b32 {S_T0}, {S_T0}, 8")
                a(f"s_add_u32 {S_T0}, {S_T0}, {L_MAXB}")
                a(f"v_add_u32 v{66+sl}, {S_T0}, v64")
                a(f"v_add_u32 v65, {S_T1}, v{66+sl}")
                a(f"ds_write_b32 v65, v{MX+2*sl}")
                a(f"ds_write_b32 v65, v{MX+2*sl+1} offset:128")
            a.wait(lg="all")
            a("s_barrier")
            for sl in range(4):
                for t in range(2):
                    for wv in range(4):
                        a(f"ds_read_b32 v{72+wv}, v{66+sl} offset:{wv*1024+t*128}")
                    a.wait(lg="all")
                    a(f"v_max3_f32 v72, v72, v73, v74")
                    a(f"v_max_f32 v{MX+2*sl+t}, v72, v75")
            for r in range(96):
                a(f"v_accvgpr_write_b32 a{r}, 0")
            for r in range(32):
                a(f"v_mov_b32 v{OV+r}, 0")
    a("s_nop 15")
    for sl in (1, 2, 3):
        for t in range(2):
            for i in range(3):
                emit([red_write(sl, t, i)])
    a.wait(lg="all")
    a("s_barrier")
    emit(rds)
    a.wait(lg="all")
    for r in range(0, 24, 2):
        a(f"v_pk_add_f32 {vr(RCV+r,2)}, {vr(RCV+r,2)}, {vr(RCV+24+r,2)}")
    a("s_branch L_attn_sum")


late.append(fallback)

a(f"s_mul_i32 {S_B1}, {S_J}, 160")
a(f"s_mul_i32 {S_T1}, {S_W}, {160*1280}")
a(f"s_add_u32 {S_B1}, {S_B1}, {S_T1}")
for i5 in range(5):
    emit(dma(f"v{WOA+5+i5}", sWO, S_B1, 0, S_B2, L_WO + 16 * 5120 + i5 * 1024, "wol"))
V_W1D = "v232"
W1R = 233
S_W1G, S_W1A, S_W1B = S_B1, S_B2, S_B3
a("v_lshrrev_b32 v60, 3, v0")
a("v_and_b32 v61, 7, v0")
a(f"v_and_b32 v62, 1, {V_G}")
a("v_lshlrev_b32 v62, 2, v62")
a("v_xor_b32 v61, v61, v62")
a("v_mul_u32_u24 v60, 3072, v60")
a(f"v_lshl_add_u32 {V_W1D}, v61, 4, v60")
a(f"s_mul_i32 {S_W1G}, {S_W}, {512*3072}")
a(f"s_lshl_b32 {S_T1}, {S_F}, 7")
a(f"s_add_u32 {S_W1G}, {S_W1G}, {S_T1}")
a(f"s_mul_i32 {S_W1A}, {S_W}, 15360")
a(f"s_add_u32 {S_W1A}, {S_W1A}, {L_W1A}")
a(f"s_mul_i32 {S_W1B}, {S_W}, 25600")


def w1_slot(k):
    s = k if k < 18 else k - 18
    return (0, s) if s < 7 else (1, s - 7)


def w1_dma(k):
    reg, s = w1_slot(k)
    L = []
    for b in range(2):
        L += dma(V_W1D, sW1, S_W1G, (16 * k + 8 * b) * 3072, (S_W1A, S_W1B)[reg], s * 2048 + b * 1024, ("w1", k))
    return L


def w1_read(k):
    reg, s = w1_slot(k)
    L = []
    for b in range(2):
        for q in range(2):
            L.append((f"ds_read_b64_tr_b16 {ar(8*k+4*b+2*q,2)}, v{W1R+2*reg+b} offset:{s*2048+q*512}", ("w1f", k)))
    return L


for k in range(4):
    emit(w1_dma(k))
V_OM, V_OL, V_WO0, V_WO1 = "v237", "v238", "v239", "v240"
a(f"s_and_b32 {S_T1}, {S_W}, 1")
a(f"s_lshl_b32 {S_T1}, {S_T1}, 4")
a(f"v_add_u32 v60, {S_T1}, {V_T16}")
a(f"v_lshlrev_b32 v61, 8, {V_G}")
a(f"v_lshl_add_u32 {V_OL}, v60, 3, v61")
a(f"v_lshlrev_b32 {V_OM}, 1, {V_OL}")
a("v_lshrrev_b32 v60, 2, v0")
a("v_and_b32 v61, 3, v0")
a("v_mul_u32_u24 v62, 160, v60")
a(f"v_lshl_add_u32 {V_WO0}, v61, 3, v62")
a(f"v_add_u32 {V_WO1}, {12*5120}, {V_WO0}")
WOF = 0


def wo_read(sig):
    ad, off = (V_WO0, sig * 5120) if sig < 12 else (V_WO1, (sig - 12) * 5120)
    return [(f"ds_read_b64_tr_b16 {ar(WOF+20*(sig%12)+4*ct+2*q,2)}, {ad} offset:{off+q*2560+ct*32}", ("wof", sig))
            for ct in range(5) for q in range(2)]


for sig in range(4):
    emit(wo_read(sig))
a("v_and_b32 v62, 3, v60")
a(f"v_lshrrev_b32 v63, 1, {V_G}")
a("v_lshlrev_b32 v63, 10, v63")
a("v_lshl_add_u32 v63, v62, 7, v63")
a("v_and_b32 v64, 1, v61")
a("v_lshl_add_u32 v63, v64, 3, v63")
a(f"v_and_b32 v64, 1, {V_G}")
a("v_lshlrev_b32 v64, 1, v64")
a("v_lshrrev_b32 v65, 1, v61")
a("v_add_u32 v64, v64, v65")
a("v_lshrrev_b32 v65, 1, v62")
a(f"s_lshr_b32 {S_T1}, {S_W}, 1")
a(f"v_xor_b32 v65, {S_T1}, v65")
a("v_lshl_add_u32 v66, v65, 2, v64")
a("v_lshl_add_u32 v66, v66, 4, v63")
a("v_xor_b32 v67, 64, v66")
a(f"v_add_u32 v{W1R}, {S_W1A}, v66")
a(f"v_add_u32 v{W1R+1}, {S_W1A}, v67")
a(f"v_add_u32 v{W1R+2}, {S_W1B}, v66")
a(f"v_add_u32 v{W1R+3}, {S_W1B}, v67")
H = 4
for ct in (4, 3, 2, 1, 0):
    s0, s1 = XR + 2 * ct, XR + 2 * ct + 1
    a(f"v_and_b32 v{H+4*ct+3}, {S_MASK}, v{s1}")
    a(f"v_lshlrev_b32 v{H+4*ct+2}, 16, v{s1}")
    a(f"v_and_b32 v{H+4*ct+1}, {S_MASK}, v{s0}")
    a(f"v_lshlrev_b32 v{H+4*ct}, 16, v{s0}")
OF = 32
a(f"s_lshr_b32 {S_T1}, {S_W}, 1")
a(f"s_lshl_b32 {S_T2}, {S_T1}, 13")
a(f"s_lshl_b32 {S_T1}, {S_T1}, 15")
a(f"s_add_u32 {S_C0}, {S_B0}, {S_T1}")
a(f"s_add_u32 {S_C1}, {S_B0}, {S_T2}")
a(f"s_add_u32 {S_C1}, {S_C1}, 65536")


def o_loads(bt):
    L = []
    if bt < 4:
        for m in range(4 * bt, 4 * bt + 4):
            if m % 2 == 0:
                L.append(f"s_add_u32 {S_T0}, {S_C0}, {m*2048}")
            L.append((f"buffer_load_dwordx4 {vr(OF+4*m,4)}, {V_OM}, {sWS}, {S_T0} offen offset:{(m%2)*2048} sc1", ("o", bt)))
    else:
        for n in range(4):
            if n % 2 == 0:
                L.append(f"s_add_u32 {S_T0}, {S_C1}, {n*2048}")
            for q in range(2):
                L.append((f"buffer_load_dwordx2 {vr(OF+64+4*n+2*q,2)}, {V_OL}, {sWS}, {S_T0} offen offset:{(n%2)*2048+q*1024} sc1", ("o", bt)))
    return L


a.wait(vm="opub")
stamp("oack")
for bt in range(5):
    emit(o_loads(bt))
for k in range(4, 7):
    emit(w1_dma(k))
for sig in range(4, 12):
    emit(wo_read(sig))
for sig in range(20):
    if sig % 4 == 0:
        bt = sig // 4
        a.wait(vm=("o", bt))
        regs = [OF + 4 * s for s in range(sig, sig + 4)] if bt < 4 else [OF + 64 + 2 * s for s in range(8)]
        emit(check_batch(regs, 112, o_loads(bt), f"o{bt}"))
        if sig == 0:
            stamp("o0")
        if sig == 4:
            assert "wol" not in a.vm
            a("s_barrier")
    a.wait(lg=("wof", sig))
    nxt = wo_read(sig + 11) if 1 <= sig <= 8 else []
    for ct in range(5):
        a(f"v_mfma_f32_16x16x32_bf16 {vr(H+4*ct,4)}, {ar(WOF+20*(sig%12)+4*ct,4)}, {vr(OF+4*sig,4)}, {vr(H+4*ct,4)}")
        emit(nxt[2 * ct:2 * ct + 2])
V_STW = "v241"
a(f"v_mov_b32 v60, {OOB}")
a(f"v_cmp_eq_u32 vcc, 0, {V_G}")
a(f"s_lshl_b32 {S_T1}, {S_TB}, 2")
a(f"s_add_u32 {S_T1}, {S_T1}, {S_W}")
a(f"s_lshl_b32 {S_T1}, {S_T1}, 10")
a(f"s_add_u32 {S_C0}, {S_T1}, {ST_BASE}")
a(f"s_add_u32 {S_C1}, {S_T1}, {HN_BASE}")
a(f"s_lshl_b32 {S_T1}, {S_J}, 7")
a(f"s_add_u32 {S_T1}, {S_T1}, {S_C0}")
a(f"v_cndmask_b32 {V_STW}, v60, {V_L8}, vcc")
a(f"v_pk_add_f32 v[60:61], {vr(H,2)}, {vr(H+2,2)}")
a(f"v_pk_mul_f32 v[62:63], {vr(H,2)}, {vr(H,2)}")
a(f"v_pk_fma_f32 v[62:63], {vr(H+2,2)}, {vr(H+2,2)}, v[62:63]")
for r in range(4, 20, 2):
    a(f"v_pk_add_f32 v[60:61], v[60:61], {vr(H+r,2)}")
    a(f"v_pk_fma_f32 v[62:63], {vr(H+r,2)}, {vr(H+r,2)}, v[62:63]")
a("v_add_f32 v60, v60, v61")
a("v_add_f32 v61, v62, v63")
xreduce([60, 61], 64)
a("v_min_u32 v61, -2, v61")
a(f"buffer_store_dwordx2 v[60:61], {V_STW}, {sWS}, {S_T1} offen sc1", tag="stpub")
stamp("oproj")
a("s_barrier")
for k in range(7, 14):
    emit(w1_dma(k))
a.wait(vm=("w1", 6))
for k in range(7):
    emit(w1_read(k))
a.wait(vm="stpub")
stamp("stack")
st_ld = [(f"buffer_load_dwordx2 v[64:65], {V_L8}, {sWS}, {S_C0} offen sc1", "st"),
         (f"buffer_load_dwordx2 v[66:67], {V_L8}, {sWS}, {S_C0} offen offset:512 sc1", "st")]
emit(st_ld)
for k in range(14, 18):
    emit(w1_dma(k))
a.wait(lg="all")
for k in range(18, 21):
    emit(w1_dma(k))
V_IW, V_IR, HNA = "v242", "v243", 244
a(f"s_add_u32 {S_T1}, {S_W1B}, 22528")
a(f"v_mul_u32_u24 v60, 176, {V_T16}")
a(f"v_lshl_add_u32 v60, {V_G}, 3, v60")
a(f"v_add_u32 {V_IW}, {S_T1}, v60")
a("v_bfe_u32 v60, v0, 2, 2")
a(f"v_and_b32 v61, 1, {V_G}")
a("v_lshl_add_u32 v60, v61, 3, v60")
a("v_mul_u32_u24 v60, 176, v60")
a(f"v_lshrrev_b32 v62, 1, {V_G}")
a("v_lshl_add_u32 v60, v62, 5, v60")
a("v_and_b32 v63, 3, v0")
a("v_lshl_add_u32 v60, v63, 3, v60")
a(f"v_add_u32 {V_IR}, {S_T1}, v60")
a(f"s_mul_i32 {S_T1}, {S_J}, 5")
a("v_lshlrev_b32 v61, 9, v61")
a(f"v_lshl_add_u32 v61, {V_T16}, 4, v61")
a(f"v_add_u32 v62, {S_T1}, v62")
for i in range(3):
    a(f"v_add_u32 v63, {2*i}, v62")
    a("v_lshrrev_b32 v68, 1, v63")
    a("v_and_b32 v63, 1, v63")
    a("v_lshl_add_u32 v68, v68, 17, v61")
    a(f"v_lshl_add_u32 v{HNA+i}, v63, 8, v68")
a(f"v_mov_b32 v63, {OOB}")
a(f"v_cmp_gt_u32 vcc, 2, {V_G}")
a(f"v_cndmask_b32 v{HNA+2}, v63, v{HNA+2}, vcc")
a.wait(vm="st")
emit(check_batch([65, 67], 68, st_ld, "st"))
a("v_add_f32 v60, v64, v66")
a("v_add_f32 v61, v65, v67")
xreduce([60, 61], 64)
a(f"v_mul_f32 v60, {f2u(1/640):#x}, v60")
a(f"v_mul_f32 v61, {f2u(1/640):#x}, v61")
a("v_fma_f32 v61, -v60, v60, v61")
a("v_max_f32 v61, 0, v61")
a(f"v_add_f32 v62, {f2u(1e-5):#x}, v61")
a("v_rsq_f32 v62, v62")
a("v_mul_f32 v63, v61, v62")
a("v_mul_f32 v63, v63, v62")
a(f"v_add_f32 v63, {f2u(1e-5):#x}, v63")
a("v_rsq_f32 v63, v63")
a("v_mul_f32 v62, v62, v63")
a("v_mul_f32 v63, v60, v62")
a("v_sub_f32 v63, 0, v63")
for ct in range(5):
    for p in range(2):
        a(f"v_pk_fma_f32 {vr(32+4*ct+2*p,2)}, {vr(H+4*ct+2*p,2)}, v[62:63], v[62:63] op_sel:[0,0,1] op_sel_hi:[1,0,1]")
    a(f"v_cvt_pk_bf16_f32 v{32+4*ct}, v{32+4*ct}, v{33+4*ct}")
    a(f"v_cvt_pk_bf16_f32 v{33+4*ct}, v{34+4*ct}, v{35+4*ct}")
    a(f"ds_write_b64 {V_IW}, {vr(32+4*ct,2)} offset:{32*ct}")
for i in range(3):
    for q in range(2):
        a(f"ds_read_b64_tr_b16 {vr(64+4*i+2*q,2)}, {V_IR} offset:{q*4*176+i*64}", tag=("hi", i))
for i in range(3):
    a.wait(lg=("hi", i))
    a(f"v_min_u32 v{64+4*i}, -2, v{64+4*i}")
    a(f"buffer_store_dwordx4 {vr(64+4*i,4)}, v{HNA+i}, {sWS}, {S_C1} offen sc1", tag="hnpub")
stamp("hnpub")

V_W2D = "v247"
W2R = 248
S_W2G, S_LW = S_KV0, S_LDSW
a("v_lshrrev_b32 v60, 3, v0")
a("v_and_b32 v61, 7, v0")
a(f"v_lshlrev_b32 v62, 1, {V_G}")
a("v_xor_b32 v61, v61, v62")
a("v_lshlrev_b32 v60, 12, v60")
a(f"v_lshl_add_u32 {V_W2D}, v61, 4, v60")
a(f"s_mul_i32 {S_W2G}, {S_W}, {384*4096}")
a(f"s_lshl_b32 {S_T1}, {S_TB}, 7")
a(f"s_add_u32 {S_W2G}, {S_W2G}, {S_T1}")
a(f"s_mul_i32 {S_LW}, {S_W}, 40960")
a("v_bfe_u32 v60, v0, 2, 3")
a("v_lshrrev_b32 v61, 1, v60")
a("v_lshrrev_b32 v62, 5, v0")
a("v_lshlrev_b32 v62, 11, v62")
a("v_lshl_add_u32 v62, v60, 7, v62")
a("v_and_b32 v63, 3, v0")
a("v_lshl_add_u32 v62, v63, 3, v62")
a(f"v_add_u32 v62, {S_LW}, v62")
a(f"v_xor_b32 v61, {S_W}, v61")
for b in range(4):
    a(f"v_xor_b32 v63, {b}, v61")
    a(f"v_lshl_add_u32 v{W2R+b}, v63, 5, v62")


def w2_dma(k):
    L = []
    for b in range(4):
        L += dma(V_W2D, sW2, S_W2G, (32 * k + 8 * b) * 4096, S_LW, (k % 7) * 4096 + b * 1024, ("w2", k))
    return L


def w2_read(k):
    return [(f"ds_read_b64_tr_b16 {ar(16*k+4*b+2*q,2)}, v{W2R+b} offset:{(k%7)*4096+q*1024}", ("w2f", k))
            for b in range(4) for q in range(2)]


a(f"s_cmp_gt_u32 {S_IDX}, 29")
a("s_cbranch_scc1 L_p3idle")
for k in range(21, 25):
    emit(w1_dma(k))
a.wait(vm=("w1", 17))
for k in range(7, 14):
    emit(w1_read(k))
a.wait(lg="all")
for k in range(25, 32):
    emit(w1_dma(k))
for k in range(14, 18):
    emit(w1_read(k))
B1 = 224
a(f"s_lshr_b32 {S_T1}, {S_W}, 1")
a(f"s_lshl_b32 {S_T1}, {S_T1}, 6")
a(f"s_lshl_b32 {S_T2}, {S_F}, 7")
a(f"s_add_u32 {S_T1}, {S_T1}, {S_T2}")
a("v_lshrrev_b32 v60, 5, v0")
a("v_lshlrev_b32 v60, 3, v60")
a(f"v_add_u32 v60, {S_T1}, v60")
for i in range(4):
    a(f"global_load_dwordx2 {vr(B1+2*i,2)}, v60, s[18:19] offset:{16*i}", tag="b1")
a(f"s_and_b32 {S_T1}, {S_W}, 1")
a(f"s_lshl_b32 {S_T2}, {S_D}, 1")
a(f"s_add_u32 {S_T1}, {S_T1}, {S_T2}")
a(f"s_lshl_b32 {S_T1}, {S_T1}, 17")
a(f"s_lshl_b32 {S_T2}, {S_W}, 15")
a(f"s_add_u32 {S_T1}, {S_T1}, {S_T2}")
a(f"s_xor_b32 {S_T2}, {S_T1}, 0x20000")
a(f"s_add_u32 {S_C0}, {S_T1}, {HN_BASE}")
a(f"s_add_u32 {S_C1}, {S_T2}, {HN_BASE}")
ACC3 = 32
HS = 96


def hn_loads(bt):
    base = S_C1 if bt < 4 else S_C0
    L = []
    for i in range(8):
        k = 8 * (bt & 3) + i
        if i % 4 == 0:
            L.append(f"s_add_u32 {S_T0}, {base}, {k*1024}")
        L.append((f"buffer_load_dwordx4 {vr(HS+32*(bt&3)+4*i,4)}, {V_L16}, {sWS}, {S_T0} offen offset:{(i%4)*1024} sc1", ("hn", bt)))
    return L


R3W = 252
V_R3R = "v255"
for dl in range(1, 4):
    a(f"s_xor_b32 {S_T1}, {S_W}, {dl}")
    a(f"s_mul_i32 {S_T1}, {S_T1}, 40960")
    a(f"s_add_u32 {S_T1}, {S_T1}, {28672 + (dl-1)*4096}")
    a(f"v_add_u32 v{R3W+dl-1}, {S_T1}, {V_L16}")
a(f"s_add_u32 {S_T1}, {S_LW}, 28672")
a(f"v_add_u32 {V_R3R}, {S_T1}, {V_L16}")
a.wait(vm="hnpub")
stamp("hnack")
for bt in range(4):
    emit(hn_loads(bt))
a.wait(vm=("w1", 24))
for k in range(18, 25):
    emit(w1_read(k))
a.wait(vm=("w1", 31))
for k in range(25, 32):
    emit(w1_read(k))
a.wait(lg="all")
a("s_barrier")


def r3_write(sa, sb, i):
    dl = sa + 2 * sb
    return (f"ds_write_b128 v{R3W+dl-1}, {vr(ACC3+16*(2*sa+sb)+4*i,4)} offset:{i*1024}", "r3w")


def r3_read(dl, i, dst):
    return (f"ds_read_b128 {vr(dst+4*i,4)}, {V_R3R} offset:{(dl-1)*4096+i*1024}", ("r3r", dl))


w2q = []
for k in range(7):
    L = w2_dma(k)
    w2q += [L[3 * i:3 * i + 3] for i in range(4)]
for bt in range(8):
    sa = 1 if bt < 4 else 0
    a.wait(vm=("hn", bt))
    emit(check_batch([HS + 32 * (bt & 3) + 4 * i for i in range(8)], 232, hn_loads(bt), f"hn{bt}"))
    if bt == 0:
        stamp("hn0")
    if bt == 6:
        a.wait(lg="all")
        a("s_barrier")
    nxt = hn_loads(bt + 4) if bt < 4 else []
    extra = []
    if bt == 4:
        extra = [[]] * 8 + [[r3_write(1, b, i)] for b in range(2) for i in range(4)]
    if bt == 6:
        extra = [[r3_read(1, i, 96)] for i in range(4)] + [[r3_read(3, i, 112)] for i in range(4)]
    if bt == 7:
        extra = [[lambda: a.wait(lg="all")]] + [[f"v_pk_add_f32 {vr(96+2*i,2)}, {vr(96+2*i,2)}, {vr(112+2*i,2)}"] for i in range(8)]
        for i in range(4):
            extra.append([f"v_lshlrev_b32 v112, 16, v{B1+2*i}", f"v_and_b32 v113, {S_MASK}, v{B1+2*i}",
                          f"v_lshlrev_b32 v114, 16, v{B1+2*i+1}", f"v_and_b32 v115, {S_MASK}, v{B1+2*i+1}",
                          f"v_pk_add_f32 {vr(96+4*i,2)}, {vr(96+4*i,2)}, v[112:113]",
                          f"v_pk_add_f32 {vr(98+4*i,2)}, {vr(98+4*i,2)}, v[114:115]"])
    n = 0
    for i in range(8):
        k = 8 * (bt & 3) + i
        for b in (1, 0):
            d = vr(ACC3 + 16 * (2 * sa + b), 16)
            c = "0" if k == 0 else d
            a(f"v_mfma_f32_32x32x16_bf16 {d}, {ar(8*k+4*b,4)}, {vr(HS+32*(bt&3)+4*i,4)}, {c}")
            if n < len(extra):
                emit(extra[n])
            n += 1
            if bt >= 4 and b == 1 and w2q:
                emit(w2q.pop(0))
        if nxt:
            emit(nxt[:2] if isinstance(nxt[0], str) else nxt[:1])
            nxt = nxt[2:] if isinstance(nxt[0], str) else nxt[1:]
assert not w2q
a("v_bfe_u32 v128, v0, 4, 1")
a("v_mul_u32_u24 v128, 49152, v128")
a("v_lshrrev_b32 v129, 5, v0")
a("v_lshl_add_u32 v128, v129, 8, v128")
a(f"v_lshl_add_u32 v128, {V_T16}, 4, v128")
a(f"s_and_b32 {S_T1}, {S_W}, 1")
a(f"s_lshl_b32 {S_T2}, {S_D}, 1")
a(f"s_add_u32 {S_T1}, {S_T1}, {S_T2}")
a(f"s_mul_i32 {S_T1}, {S_T1}, 96")
a(f"s_lshl_b32 {S_T2}, {S_F}, 1")
a(f"s_add_u32 {S_T1}, {S_T1}, {S_T2}")
a(f"s_lshr_b32 {S_T2}, {S_W}, 1")
a(f"s_add_u32 {S_T1}, {S_T1}, {S_T2}")
a(f"s_lshl_b32 {S_T1}, {S_T1}, 10")
a(f"s_add_u32 {S_T1}, {S_T1}, {U_BASE}")
for i in range(4):
    emit([r3_write(0, 1, i)])
for i in range(8):
    a(f"v_pk_add_f32 {vr(96+2*i,2)}, {vr(96+2*i,2)}, {vr(ACC3+2*i,2)}")
a.wait(lg="all")
a("s_barrier")
for i in range(4):
    x = r3_read(2, i, 112)
    a(x[0], tag=("r3z", i))
stamp("p3mm")
GC = math.sqrt(2.0 / math.pi) * 2.0 * math.log2(math.e)
a(f"s_mov_b32 {S_C0}, {f2u(-GC*0.044715):#x}")
a(f"s_mov_b32 {S_C1}, {f2u(-GC*0.044715):#x}")
a(f"v_mov_b32 v130, {f2u(-GC):#x}")
a(f"v_mov_b32 v131, {f2u(-GC):#x}")
for m in range(2):
    for i in (2 * m, 2 * m + 1):
        a.wait(lg=("r3z", i))
        for p in range(2):
            x = 96 + 4 * i + 2 * p
            t = 132 + 2 * p
            a(f"v_pk_add_f32 {vr(x,2)}, {vr(x,2)}, {vr(112+4*i+2*p,2)}")
            a(f"v_pk_mul_f32 {vr(t,2)}, {vr(x,2)}, {vr(x,2)}")
            a(f"v_pk_fma_f32 {vr(t,2)}, {vr(t,2)}, s[90:91], v[130:131]")
            a(f"v_pk_mul_f32 {vr(t,2)}, {vr(t,2)}, {vr(x,2)}")
        for r in range(4):
            a(f"v_exp_f32 v{132+r}, v{132+r}")
        for p in range(2):
            a(f"v_pk_add_f32 {vr(132+2*p,2)}, {vr(132+2*p,2)}, 1.0 op_sel_hi:[1,0]")
        for r in range(4):
            a(f"v_rcp_f32 v{132+r}, v{132+r}")
        for p in range(2):
            a(f"v_pk_mul_f32 {vr(132+2*p,2)}, {vr(132+2*p,2)}, {vr(96+4*i+2*p,2)}")
        for p in range(2):
            a(f"v_cvt_pk_bf16_f32 v{136+4*m+2*(i&1)+p}, v{132+2*p}, v{133+2*p}")
    a(f"v_min_u32 v{136+4*m}, -2, v{136+4*m}")
    a(f"buffer_store_dwordx4 {vr(136+4*m,4)}, v128, {sWS}, {S_T1} offen offset:{512*m} sc1", tag="upub")
stamp("upub")
a.label("L_p3join")


def p3idle():
    a.label("L_p3idle")
    a("s_waitcnt vmcnt(0) lgkmcnt(0)")
    a.vm = []
    a.lg = []
    a("s_barrier")
    for k in range(7):
        emit(w2_dma(k))
    a(f"s_mul_i32 {S_T1}, {S_J}, {5*48}")
    a(f"s_mul_i32 {S_T2}, {S_W}, 12")
    a(f"s_add_u32 {S_T1}, {S_T1}, {S_T2}")
    a(f"s_lshl_b32 {S_T1}, {S_T1}, 10")
    a(f"s_add_u32 {S_T1}, {S_T1}, {U_BASE}")
    a("v_mov_b32 v60, 0")
    a.label("L_p3poll")
    a(f"buffer_load_dword v61, v60, {sWS}, {S_T1} offen sc1")
    a("s_waitcnt vmcnt(0)")
    a.vm = []
    a("v_cmp_eq_u32 vcc, -1, v61")
    a("s_cbranch_vccz L_p3join")
    a(f"s_sub_u32 {S_RETRY}, {S_RETRY}, 1")
    a("s_cbranch_scc1 L_exit")
    a("s_sleep 8")
    a("s_branch L_p3poll")


late.append(p3idle)

a.wait(vm=("w2", 6))
for k in range(5):
    emit(w2_read(k))
a.wait(lg="all")
for k in range(7, 12):
    emit(w2_dma(k))
for k in range(5, 7):
    emit(w2_read(k))
V_B2 = "v232"
a(f"s_lshl_b32 {S_T1}, {S_TB}, 2")
a(f"s_add_u32 {S_T1}, {S_T1}, {S_W}")
a(f"s_lshl_b32 {S_T2}, {S_T1}, 5")
a(f"v_lshlrev_b32 v60, 1, {V_T16}")
a(f"v_add_u32 v60, {S_T2}, v60")
a(f"global_load_ushort {V_B2}, v60, s[22:23]", tag="b2")
a(f"s_mul_i32 {S_C1}, {S_T1}, {16*1280}")
a(f"s_mul_i32 {S_T2}, {S_J}, 160")
a(f"s_add_u32 {S_C1}, {S_C1}, {S_T2}")
a(f"s_mul_i32 {S_T1}, {S_J}, {5*48}")
a(f"s_mul_i32 {S_T2}, {S_W}, 12")
a(f"s_add_u32 {S_T1}, {S_T1}, {S_T2}")
a(f"s_lshl_b32 {S_T1}, {S_T1}, 10")
a(f"s_add_u32 {S_C0}, {S_T1}, {U_BASE}")
ACC4 = 32
US = 112


def u_loads(bt):
    ct, hf = bt >> 1, bt & 1
    L = []
    for i in range(6):
        k = 6 * hf + i
        if i % 3 == 0:
            L.append(f"s_add_u32 {S_T0}, {S_C0}, {(ct*48+k)*1024}")
        L.append((f"buffer_load_dwordx4 {vr(US+24*(bt%5)+4*i,4)}, {V_L16}, {sWS}, {S_T0} offen offset:{(i%3)*1024} sc1", ("u", bt)))
    return L


R4W = 252
V_R4R = "v255"
for dl in range(1, 4):
    a(f"s_xor_b32 {S_T1}, {S_W}, {dl}")
    a(f"s_mul_i32 {S_T1}, {S_T1}, 40960")
    a(f"s_add_u32 {S_T1}, {S_T1}, {20480 + (dl-1)*5120}")
    a(f"v_add_u32 v{R4W+dl-1}, {S_T1}, {V_L16}")
a(f"s_add_u32 {S_T1}, {S_LW}, 20480")
a(f"v_add_u32 {V_R4R}, {S_T1}, {V_L16}")
V_OW, V_OR, OUTA = "v233", "v234", 235
a(f"s_add_u32 {S_T1}, {S_LW}, 35840")
a(f"v_mul_u32_u24 v60, 160, {V_T16}")
a(f"v_lshl_add_u32 v60, {V_G}, 3, v60")
a(f"v_add_u32 {V_OW}, {S_T1}, v60")
a(f"v_add_u32 {V_OR}, {S_T1}, {V_L16}")
for i in range(3):
    a(f"v_add_u32 v60, {64*i}, v0")
    a("v_mul_u32_u24 v61, 6554, v60")
    a("v_lshrrev_b32 v61, 16, v61")
    a("v_mul_u32_u24 v62, 1120, v61")
    a(f"v_lshl_add_u32 v{OUTA+i}, v60, 4, v62")
a(f"v_mov_b32 v60, {OOB}")
a("v_cmp_gt_u32 vcc, 32, v0")
a(f"v_cndmask_b32 v{OUTA+2}, v60, v{OUTA+2}, vcc")
a.wait(vm="upub")
stamp("uack")
for bt in range(5):
    emit(u_loads(bt))
a.wait(vm=("w2", 11))
a.wait(lg="all")
a("s_barrier")
for k in range(7, 12):
    emit(w2_read(k))


def r4_write(ct, b):
    return (f"ds_write_b128 v{R4W+b-1}, {vr(ACC4+16*ct+4*b,4)} offset:{ct*1024}", "r4w")


def r4_read(ct, b, dst):
    return (f"ds_read_b128 {vr(dst,4)}, {V_R4R} offset:{(b-1)*5120+ct*1024}", ("r4r", ct))


for bt in range(10):
    ct, hf = bt >> 1, bt & 1
    a.wait(vm=("u", bt))
    emit(check_batch([US + 24 * (bt % 5) + 4 * i for i in range(6)], 238, u_loads(bt), f"u{bt}"))
    if bt == 0:
        stamp("u0")
    if bt == 1:
        a.wait(lg="all")
    extra = []
    if hf == 0 and ct > 0:
        extra = [[]] * 8 + [[r4_write(ct - 1, b)] for b in range(1, 4)]
    if bt == 9:
        a.wait(lg="all")
        a("s_barrier")
        extra = [[r4_read(c, b, US + 12 * c + 4 * (b - 1))] for c in range(4) for b in range(1, 4)]
    nxt = u_loads(bt + 5) if bt < 5 else []
    n = 0
    for i in range(6):
        k = 6 * hf + i
        for b in (1, 2, 3, 0):
            d = vr(ACC4 + 16 * ct + 4 * b, 4)
            c = d if k else (vr(H + 4 * ct, 4) if b == 0 else "0")
            a(f"v_mfma_f32_16x16x32_bf16 {d}, {vr(US+24*(bt%5)+4*i,4)}, {ar(16*k+4*b,4)}, {c}")
            if n < len(extra):
                emit(extra[n])
            n += 1
        if nxt:
            emit(nxt[:2] if isinstance(nxt[0], str) else nxt[:1])
            nxt = nxt[2:] if isinstance(nxt[0], str) else nxt[1:]


def fin(ct):
    r = US + 12 * ct
    o = ACC4 + 16 * ct
    for p in range(2):
        a(f"v_pk_add_f32 {vr(r+2*p,2)}, {vr(r+2*p,2)}, {vr(r+4+2*p,2)}")
        a(f"v_pk_add_f32 {vr(o+2*p,2)}, {vr(o+2*p,2)}, {vr(r+8+2*p,2)}")
        a(f"v_pk_add_f32 {vr(r+2*p,2)}, {vr(r+2*p,2)}, v[240:241]")
    for p in range(2):
        a(f"v_pk_add_f32 {vr(o+2*p,2)}, {vr(o+2*p,2)}, {vr(r+2*p,2)}")
    a(f"v_cvt_pk_bf16_f32 v{o}, v{o}, v{o+1}")
    a(f"v_cvt_pk_bf16_f32 v{o+1}, v{o+2}, v{o+3}")
    a(f"ds_write_b64 {V_OW}, {vr(o,2)} offset:{32*ct}", tag="ow")


a.wait(vm="b2")
a(f"v_lshlrev_b32 v240, 16, {V_B2}")
a(f"v_lshlrev_b32 v241, 16, {V_B2}")
a.wait(lg=("r4r", 0))
fin(0)
for b in range(1, 4):
    emit([r4_write(4, b)])
a.wait(lg=("r4r", 3))
fin(1)
a.wait(lg="r4w")
a("s_barrier")
for b in range(1, 4):
    emit([r4_read(4, b, US + 48 + 4 * (b - 1))])
fin(2)
fin(3)
a.wait(lg=("r4r", 4))
fin(4)
for i in range(3):
    a(f"ds_read_b128 {vr(176+4*i,4)}, {V_OR} offset:{1024*i}", tag=("or", i))
for i in range(3):
    a.wait(lg=("or", i))
    a(f"buffer_store_dwordx4 {vr(176+4*i,4)}, v{OUTA+i}, {sOUT}, {S_C1} offen")
if STAMP:
    stamp("outst")
    a.wait(vm="all")
    stamp("end")
    a(f"v_writelane_b32 {V_ST}, {S_RETRY}, 31")
    a(f"s_lshl_b32 {S_T0}, s2, 2")
    a(f"s_add_u32 {S_T0}, {S_T0}, {S_W}")
    a(f"s_lshl_b32 {S_T0}, {S_T0}, 8")
    a(f"s_add_u32 {S_T0}, {S_T0}, {STAMP_BASE}")
    a("v_lshlrev_b32 v60, 2, v0")
    a(f"buffer_store_dword {V_ST}, v60, {sWS}, {S_T0} offen")
a.label("L_exit")
a("s_endpgm")
for f in late:
    f()

for k, ins in enumerate(a.ins):
    if ins.text.startswith(f"s_mov_b32 {S_RETRY}"):
        from asmlib import Ins
        a.ins.insert(k, Ins(f"s_mov_b32 {S_FBI}, 0"))
        break

body = a.finish(verbose="--vpad" in sys.argv)
hdr = open(f"cdna_kernels/{NAME}.s.ref").read().split("; Override launch")[0]
src = hdr + f"""; One persistent launch: 256 workgroups (one per CU) x 4 waves; phases hand data over through d_ws.
; @launch grid=(256,1,1) block=(256,1,1) lds=163840
.amdgcn_target "amdgcn-amd-amdhsa--gfx950"
.text
.globl {NAME}_kernel
.p2align 8
.type {NAME}_kernel,@function
{NAME}_kernel:
{body}
.section .rodata,"a"
.p2align 6
.amdhsa_kernel {NAME}_kernel
  .amdhsa_next_free_vgpr 512
  .amdhsa_next_free_sgpr 102
  .amdhsa_accum_offset 256
  .amdhsa_group_segment_fixed_size 0
  .amdhsa_kernarg_size 104
  .amdhsa_user_sgpr_count 2
  .amdhsa_user_sgpr_kernarg_segment_ptr 1
  .amdhsa_system_sgpr_workgroup_id_x 1
  .amdhsa_float_denorm_mode_32 3
.end_amdhsa_kernel
"""
open(OUT, "w").write(src)
if STAMP:
    open(OUT + ".stamps", "w").write(" ".join(stamp_names))
print("wrote", OUT, "instructions", sum(1 for i in a.ins if i.mn), "nops added", a.nops_added)
```

```python
import re

REG_RE = re.compile(r"^(-|abs\()?([vas])(?:(\d+)|\[(\d+):(\d+)\])\)?$")


def regs_of(op):
    op = op.strip()
    if op in ("vcc", "exec", "m0", "scc"):
        return {op}
    if op in ("vcc_lo", "vcc_hi"):
        return {"vcc"}
    if op in ("exec_lo", "exec_hi"):
        return {"exec"}
    m = REG_RE.match(op)
    if not m:
        return set()
    k = m.group(2)
    if m.group(3) is not None:
        return {k + m.group(3)}
    return {k + str(i) for i in range(int(m.group(4)), int(m.group(5)) + 1)}


TRANS = ("v_exp_f32", "v_log_f32", "v_rcp_f32", "v_rsq_f32", "v_sqrt_f32", "v_sin_f32", "v_cos_f32")


class Ins:
    __slots__ = ("text", "mn", "ops", "kind", "wr", "rd", "passes", "srcA", "srcB", "srcC", "dst", "stdata")

    def __init__(self, text):
        self.text = text
        t = text.split(";")[0].strip()
        self.kind = "other"
        self.wr = set()
        self.rd = set()
        self.passes = 0
        self.srcA = self.srcB = self.srcC = self.dst = self.stdata = set()
        if not t or t.endswith(":") or t.startswith("."):
            self.mn = ""
            self.ops = []
            self.kind = "label" if t.endswith(":") else "none"
            return
        p = t.split(None, 1)
        self.mn = mn = p[0]
        rest = p[1] if len(p) > 1 else ""
        ops = [o.strip() for o in rest.split(",")]
        ops2 = []
        for o in ops:
            ops2.append(o.split()[0] if o else o)
        self.ops = ops = ops2
        R = [regs_of(o) for o in ops]
        allr = lambda lst: set().union(*lst) if lst else set()
        if mn.startswith("v_mfma") or mn.startswith("v_smfmac"):
            self.kind = "mfma"
            if "32x32x4_2b" in mn:
                self.passes = 16
            elif "32x32" in mn:
                self.passes = 8
            elif "16x16" in mn:
                self.passes = 4
            else:
                raise ValueError(mn)
            self.dst = R[0]
            self.srcA, self.srcB = R[1], R[2]
            if mn.startswith("v_smfmac"):
                self.srcC = R[0]
                self.srcB = R[2] | R[3]
            else:
                self.srcC = R[3]
            self.wr = R[0]
            self.rd = self.srcA | self.srcB | self.srcC
        elif mn.startswith("v_"):
            self.kind = "valu"
            if mn.startswith("v_permlane") and "swap" in mn:
                self.wr = R[0] | R[1]
                self.rd = R[0] | R[1]
            elif mn.startswith("v_cmp"):
                self.wr = R[0]
                self.rd = allr(R[1:])
            elif "_co_" in mn:
                self.wr = R[0] | R[1]
                self.rd = allr(R[2:])
            else:
                self.wr = R[0]
                self.rd = allr(R[1:])
                if mn.startswith("v_fmac") or mn.startswith("v_dot2c") or "dpp" in text or "sdwa" in mn:
                    self.rd |= R[0]
                if mn.startswith("v_cndmask") and len(ops) == 3:
                    self.rd |= {"vcc"}
        elif mn.startswith("ds_"):
            self.kind = "ds"
            if mn.startswith("ds_read") or mn.startswith("ds_bperm") or mn.startswith("ds_swz"):
                self.wr = R[0]
                self.rd = allr(R[1:])
            else:
                self.rd = allr(R)
        elif mn.startswith("buffer_") or mn.startswith("global_"):
            self.kind = "vmem"
            lds = re.search(r"\blds\b", rest) is not None or "_lds_" in mn
            if "load" in mn and not lds:
                self.wr = R[0]
                self.rd = allr(R[1:])
                if "d16" in mn:
                    self.rd |= R[0]
            else:
                self.rd = allr(R)
                if lds:
                    self.rd |= {"m0"}
                if "store" in mn and ("x4" in mn or "x3" in mn):
                    self.stdata = R[0] if mn.startswith("buffer_") else R[1]
        elif mn.startswith("s_"):
            self.kind = "salu"
            if mn.startswith("s_load") or mn.startswith("s_memtime") or mn.startswith("s_memrealtime"):
                self.kind = "smem"
                self.wr = R[0]
                self.rd = allr(R[1:])
            elif mn.startswith("s_cmp") or mn.startswith("s_bitcmp"):
                self.rd = allr(R)
            elif mn in ("s_nop", "s_waitcnt", "s_barrier", "s_sleep", "s_endpgm", "s_setprio") or mn.startswith("s_branch") or mn.startswith("s_cbranch"):
                pass
            else:
                self.wr = R[0]
                self.rd = allr(R[1:])
                if "saveexec" in mn:
                    self.wr |= {"exec"}

    def states(self):
        if self.kind in ("label", "none"):
            return 0
        if self.mn == "s_nop":
            return int(self.ops[0]) + 1
        return 1


def need_between(p, c):
    n = 0
    isv = lambda s: {r for r in s if r[0] in "va" and r != "vcc"}
    iss = lambda s: {r for r in s if r[0] == "s" or r == "vcc"}
    if p.kind == "valu":
        wv = isv(p.wr)
        ws = iss(p.wr)
        if c.kind == "mfma" and wv & c.rd:
            n = max(n, 2)
        if p.mn.startswith("v_dot") and wv & (c.rd | c.wr) and c.mn != p.mn:
            n = max(n, 3)
        if c.kind == "valu":
            if p.mn.replace("_e32", "").replace("_e64", "") in TRANS and wv & c.rd:
                n = max(n, 1)
            if c.mn.startswith("v_permlane") and wv & c.rd:
                n = max(n, 2)
            if "dpp" in c.text and wv & c.rd:
                n = max(n, 2)
            if (c.mn.startswith("v_readfirstlane") or c.mn.startswith("v_readlane")) and wv & c.rd:
                n = max(n, 1)
            if ws & c.rd:
                n = max(n, 4 if c.mn.startswith("v_readlane") or c.mn.startswith("v_writelane") else 2)
            if ("sdwa" in p.mn or "op_sel" in p.text and not p.mn.startswith("v_pk")) and wv & (c.rd | c.wr):
                n = max(n, 1)
        if c.kind == "vmem" and ws & c.rd:
            n = max(n, 5)
        if c.kind in ("salu", "smem") and ws & c.rd:
            n = max(n, 1)
    elif p.kind == "mfma":
        tab_ab = {4: 8, 8: 12, 16: 20}[p.passes]
        tab_c = {4: 6, 8: 10, 16: 18}[p.passes]
        if c.kind == "mfma":
            if p.dst & (c.srcA | c.srcB):
                n = max(n, tab_ab)
            if p.dst & c.srcC and not (p.dst == c.srcC and p.passes == c.passes):
                n = max(n, tab_c)
            elif p.dst & c.dst and not (p.dst == c.dst and p.passes == c.passes):
                n = max(n, tab_c)
        elif c.kind in ("valu", "vmem", "ds"):
            if p.dst & (c.rd | c.wr):
                n = max(n, tab_ab)
            if c.kind == "valu" and p.srcC & c.wr:
                n = max(n, {4: 3, 8: 7, 16: 15}[p.passes])
    elif p.kind == "salu":
        if "m0" in p.wr and "m0" in c.rd and c.kind == "vmem":
            n = max(n, 1)
    elif p.kind == "vmem":
        if p.stdata & c.wr:
            n = max(n, 2 if c.kind == "valu" else 1)
    return n


class Asm:
    def __init__(self):
        self.ins = []
        self.vm = []
        self.lg = []
        self.smem = False
        self.nlab = 0
        self.nops_added = 0
        self.seen = set()

    def __call__(self, text, tag=None):
        for line in text.split("\n"):
            line = line.strip()
            if not line:
                continue
            i = Ins(line)
            self.ins.append(i)
            self.seen.add(tag)
            if i.kind == "vmem":
                self.vm.append(tag)
                assert len(self.vm) <= 61, line
            elif i.kind == "ds":
                self.lg.append(tag)
            elif i.kind == "smem":
                self.smem = True

    def label(self, name):
        self.ins.append(Ins(name + ":"))

    def newlabel(self, base):
        self.nlab += 1
        return f"L_{base}_{self.nlab}"

    def comment(self, t):
        self.ins.append(Ins("; " + t))

    def _count(self, q, tag):
        tags = tag if isinstance(tag, (list, tuple, set)) and not isinstance(tag, str) else [tag]
        if isinstance(tag, tuple):
            tags = [tag]
        last = -1
        assert all(t in self.seen for t in tags), ("wait for a tag that was never issued", tags)
        for k, t in enumerate(q):
            if t in tags:
                last = k
        return last

    def wait_text(self, vm=None, lg=None):
        parts = []
        if vm is not None:
            if vm == "all":
                if self.vm:
                    parts.append("vmcnt(0)")
                self.vm = []
            else:
                last = self._count(self.vm, vm)
                if last >= 0:
                    n = len(self.vm) - 1 - last
                    parts.append(f"vmcnt({n})")
                    self.vm = self.vm[last + 1:]
        if lg is not None:
            if lg == "all" or self.smem:
                if self.lg or self.smem:
                    parts.append("lgkmcnt(0)")
                self.lg = []
                self.smem = False
            else:
                last = self._count(self.lg, lg)
                if last >= 0:
                    n = len(self.lg) - 1 - last
                    if n > 15:
                        n = 15
                    parts.append(f"lgkmcnt({n})")
                    self.lg = self.lg[len(self.lg) - n:] if n else []
        if not parts:
            return None
        return "s_waitcnt " + " ".join(parts)

    def wait(self, vm=None, lg=None):
        t = self.wait_text(vm, lg)
        if t:
            self.ins.append(Ins(t))

    def snapshot(self):
        return (list(self.vm), list(self.lg), self.smem)

    def restore(self, s):
        self.vm, self.lg, self.smem = list(s[0]), list(s[1]), s[2]

    def finish(self, verbose=False):
        out = []
        for c in self.ins:
            if c.kind not in ("label", "none"):
                need = 0
                dist = 0
                for p in reversed(out):
                    if p.mn == "s_branch" or p.mn == "s_endpgm":
                        break
                    if p.kind not in ("label", "none"):
                        n = need_between(p, c)
                        if n > dist:
                            need = max(need, n - dist)
                    dist += p.states()
                    if dist >= 21:
                        break
                if need:
                    self.nops_added += need
                    if verbose:
                        print("pad", need, "before", c.text)
                    while need > 0:
                        k = min(need, 16)
                        out.append(Ins(f"s_nop {k-1}"))
                        need -= k
            out.append(c)
        lines = []
        for i in out:
            if i.kind == "label":
                lines.append(i.text)
            else:
                lines.append("  " + i.text)
        return "\n".join(lines)
```

```python
import sys, os, math, struct
sys.path.insert(0, os.path.dirname(os.path.abspath(__file__)))
from asmlib import Asm, Ins

NAME = "sequential_preLN__grouped_kv_mqa__mixer_token_mlp__prompt"
ARGS = sys.argv[1:]


def opt(name, default):
    for x in ARGS:
        if x.startswith(f"--{name}="):
            return type(default)(x.split("=", 1)[1])
    return default


STAMP = "--stamp" in ARGS
FORCE_FB = "--forcefb" in ARGS
XMAP = "--xmap" in ARGS
TOUCH = opt("touch", 2)
FASTHOP = opt("fasthop", 1)
OUT = [x for x in ARGS if not x.startswith("--")]
OUT = OUT[0] if OUT else f"cdna_kernels/{NAME}.s"


def f2u(x):
    return struct.unpack("<I", struct.pack("<f", x))[0]


KV_BLK = 6144
BIG = 0x100000
O_BASE = BIG
O_BLK = 81920
ST_BASE = O_BASE + 32 * O_BLK
HN_BASE = ST_BASE + 131072
U_BASE = HN_BASE + 2621440
BIG_END = U_BASE + 1966080
assert BIG_END - BIG == 256 * 28672
STAMP_BASE = 0xA00000
WS_BYTES = 0x1000000
OOB = 0x7F000000

L_WKV = 81920
L_WQ = 107520
L_Q = 98304
L_WO = 0
L_RED = 102400
L_W1S = 126976
L_FLAG = 159744

sX, sWQ, sWKV, sWO, sW1, sW2, sOUT, sWS = (f"s[{b}:{b+3}]" for b in (32, 36, 40, 44, 48, 52, 56, 60))
S_W, S_XCD, S_IDX, S_TB, S_J, S_D, S_F = "s64", "s65", "s66", "s67", "s68", "s69", "s70"
S_T0, S_T1, S_T2, S_T3 = "s71", "s72", "s73", "s74"
S_RETRY = "s75"
S_MASK = "s76"
S_KVB = "s77"
S_B0, S_B1, S_B2 = "s78", "s79", "s30"
S_FL = 80
S_CNT = "s88"
S_LDSW = "s89"
S_C0, S_C1 = "s90", "s91"
S_FBI = "s31"
S_KV0 = "s92"
S_W1G, S_W1L = "s93", "s94"
S_PF = "s95"
S_WG = "s3"
S_OPM, S_OPL, S_OLM, S_OLL, S_STB, S_STW, S_HNB = "s80", "s81", "s82", "s83", "s84", "s85", "s86"
S_W2G, S_LW, S_REDW = "s4", "s5", "s6"
S_RT, S_FAST, S_GRP, S_XO = "s7", "s8", "s9", "s10"

V_L16, V_T16, V_G, V_L8, V_IDX, V_VA, V_ST = "v1", "v2", "v3", "v4", "v5", "v6", "v7"
XR = 8
V_OM, V_XRA, V_W1D = "v18", "v19", "v20"
W1R = 21
V_RW = 23
V_RR = "v26"
WOA = 254

real = Asm()
late = []


class Cap:
    def __init__(self):
        self.l = []

    def __call__(self, text, tag=None):
        self.l.append((text, tag) if tag is not None else text)


class Front:
    def __init__(self):
        self.tgt = real

    def __call__(self, text, tag=None):
        self.tgt(text, tag=tag)

    def __getattr__(self, n):
        assert self.tgt is real, n
        return getattr(real, n)

    def __setattr__(self, n, v):
        if n == "tgt":
            object.__setattr__(self, n, v)
        else:
            setattr(real, n, v)


a = Front()


def capture(fn):
    c = Cap()
    a.tgt = c
    fn()
    a.tgt = real
    return c.l


def vr(b, n=1):
    return f"v{b}" if n == 1 else f"v[{b}:{b+n-1}]"


def ar(b, n=1):
    return f"a{b}" if n == 1 else f"a[{b}:{b+n-1}]"


def rr(spec, n, off=0):
    k, b = spec
    b += off
    return f"{k}{b}" if n == 1 else f"{k}[{b}:{b+n-1}]"


nstamp = [0]
stamp_names = []


def stamp(name):
    if not STAMP:
        return
    i = nstamp[0]
    nstamp[0] += 1
    stamp_names.append(name)
    a("s_memrealtime s[96:97]")
    a("s_memtime s[98:99]")
    a.wait(lg="all")
    a(f"v_writelane_b32 {V_ST}, s96, {i}")
    a(f"v_writelane_b32 {V_ST}, s98, {32+i}")


def srd(dst, ptr, nbytes):
    b = int(dst[2:dst.index(":")])
    a(f"s_mov_b64 s[{b}:{b+1}], s[{ptr}:{ptr+1}]")
    a(f"s_mov_b32 s{b+2}, {nbytes}")
    a(f"s_mov_b32 s{b+3}, 0x20000")


def dma(vaddr, s, soff_base, soff_add, lds_base, lds_add, tag, flags=""):
    ins = []
    ins.append(f"s_add_u32 m0, {lds_base}, {lds_add}" if lds_base else f"s_mov_b32 m0, {lds_add}")
    ins.append(f"s_add_u32 {S_T0}, {soff_base}, {soff_add}" if soff_base else f"s_mov_b32 {S_T0}, {soff_add}")
    ins.append((f"buffer_load_dwordx4 {vaddr}, {s}, {S_T0} offen {flags} lds", tag))
    return ins


def emit(lst):
    for x in lst:
        if isinstance(x, tuple):
            a(x[0], tag=x[1])
        elif callable(x):
            x()
        elif isinstance(x, list):
            emit(x)
        else:
            a(x)


def weave(groups, fill, per):
    fill = list(fill)
    for g in groups:
        emit(g)
        emit(fill[:per])
        fill = fill[per:]
    return fill


def check_parts(regs, tmp, reissue, name):
    lb = a.newlabel("ok" + name)
    lr = a.newlabel("rty" + name)
    items = []
    regs = list(regs)
    if len(regs) == 2:
        items.append(f"v_max_u32 v{tmp}, v{regs[0]}, v{regs[1]}")
        rest = []
    else:
        items.append(f"v_max3_u32 v{tmp}, v{regs[0]}, v{regs[1]}, v{regs[2]}")
        rest = regs[3:]
    while len(rest) >= 2:
        items.append(f"v_max3_u32 v{tmp}, v{tmp}, v{rest[0]}, v{rest[1]}")
        rest = rest[2:]
    if rest:
        items.append(f"v_max_u32 v{tmp}, v{tmp}, v{rest[0]}")
    items.append(f"v_cmp_eq_u32 vcc, -1, v{tmp}")
    test = list(items)
    items.append([f"s_cbranch_vccnz {lr}", lambda: a.label(lb)])

    def ool():
        a.label(lr)
        a(f"s_sub_u32 {S_RETRY}, {S_RETRY}, 1")
        a("s_cbranch_scc1 L_exit")
        a(f"s_sleep {opt('rsleep', 1)}")
        emit(reissue)
        a("s_waitcnt vmcnt(0)")
        a.vm = []
        emit(test)
        a(f"s_cbranch_vccnz {lr}")
        a(f"s_branch {lb}")
    late.append(ool)
    return items


def xreduce(regs, tmp):
    for sw in ("v_permlane16_swap_b32", "v_permlane32_swap_b32"):
        for i, r in enumerate(regs):
            a(f"v_mov_b32 v{tmp+i}, v{r}")
        for i, r in enumerate(regs):
            a(f"{sw} v{r}, v{tmp+i}")
        for i, r in enumerate(regs):
            a(f"v_add_f32 v{r}, v{r}, v{tmp+i}")


a("s_cmp_ge_u32 s2, 256")
a("s_cbranch_scc1 L_exit")
a("s_load_dwordx16 s[4:19], s[0:1], 0")
a("s_load_dwordx8 s[20:27], s[0:1], 64")
a("s_load_dwordx2 s[28:29], s[0:1], 96")
a("s_getpc_b64 s[100:101]")
a("v_lshrrev_b32 v1, 6, v0")
a("v_and_b32 v0, 63, v0")
a(f"v_readfirstlane_b32 {S_W}, v1")
a(f"v_lshlrev_b32 {V_L16}, 4, v0")
a(f"v_and_b32 {V_T16}, 15, v0")
a(f"v_lshrrev_b32 {V_G}, 4, v0")
if XMAP:
    a(f"s_lshr_b32 {S_XCD}, s2, 5")
    a(f"s_and_b32 {S_IDX}, s2, 31")
else:
    a(f"s_and_b32 {S_XCD}, s2, 7")
    a(f"s_lshr_b32 {S_IDX}, s2, 3")
a(f"s_lshr_b32 {S_T0}, {S_IDX}, 3")
a(f"s_lshl_b32 {S_TB}, {S_XCD}, 2")
a(f"s_add_u32 {S_TB}, {S_TB}, {S_T0}")
a(f"s_and_b32 {S_J}, {S_IDX}, 7")
a(f"s_mov_b32 {S_MASK}, 0xffff0000")
a(f"s_mov_b32 {S_FBI}, 0")
a(f"s_mov_b32 {S_RETRY}, 400000")
XA = 76
a("v_lshrrev_b32 v60, 3, v0")
a("v_and_b32 v61, 7, v0")
a(f"v_xor_b32 v62, v61, {V_G}")
a("v_mul_u32_u24 v63, 1280, v60")
a(f"v_lshl_add_u32 v{XA}, v62, 4, v63")
a("v_xor_b32 v62, 4, v62")
a(f"v_lshl_add_u32 v{XA+1}, v62, 4, v63")
a(f"v_add_u32 v{XA+1}, {8*1280}, v{XA+1}")
a(f"s_lshl_b32 {S_B0}, {S_TB}, 2")
a(f"s_add_u32 {S_B0}, {S_B0}, {S_W}")
a(f"s_mul_i32 {S_B0}, {S_B0}, {16*1280}")
a(f"s_mul_i32 {S_LDSW}, {S_W}, 20480")
a("v_lshlrev_b32 v64, 7, v0")
a(f"s_lshl_b32 {S_T1}, {S_IDX}, 2")
a(f"s_add_u32 {S_WG}, {S_T1}, {S_W}")
a.wait(lg="all")
if STAMP:
    a(f"v_mov_b32 {V_ST}, 0")
stamp("start")
srd(sX, 4, 2048 * 1280)


def touch_x():
    a(f"s_and_b32 {S_T1}, {S_WG}, 31")
    a(f"s_mul_i32 {S_T1}, {S_T1}, 2560")
    a(f"s_mul_i32 {S_T2}, {S_TB}, 81920")
    a(f"s_add_u32 {S_T1}, {S_T1}, {S_T2}")
    a("s_mov_b64 exec, 0xfffff")
    a(f"buffer_load_dword v65, v64, {sX}, {S_T1} offen", tag="touch")
    a("s_mov_b64 exec, -1")


def touch_w():
    a(f"s_lshl_b32 {S_T1}, {S_WG}, 9")
    a(f"s_min_u32 {S_T1}, {S_T1}, CODE_TOUCH_MAX")
    a(f"v_add_u32 v66, {S_T1}, v64")
    a("s_mov_b64 exec, 15")
    a("global_load_dword v65, v66, s[100:101]", tag="touch")
    a(f"s_bitcmp1_b32 {S_WG}, 0")
    a("s_cselect_b32 s40, s8, s10")
    a("s_cselect_b32 s41, s9, s11")
    a("s_mov_b32 s42, 25600")
    a("s_mov_b32 s43, 0x20000")
    a(f"s_lshr_b32 {S_T1}, {S_WG}, 1")
    a(f"s_lshl_b32 {S_T1}, {S_T1}, 9")
    a(f"buffer_load_dword v65, v64, {sWKV}, {S_T1} offen", tag="touch")
    a("s_mov_b32 exec_lo, -1")
    a("s_mov_b32 exec_hi, 0x3ffff")
    a(f"s_mul_i32 {S_T1}, {S_WG}, 6400")
    a(f"buffer_load_dword v65, v64, {sWQ}, {S_T1} offen", tag="touch")
    a("s_mov_b64 exec, -1")


srd(sWS, 28, WS_BYTES)

snap = a.snapshot()
a(f"s_cmp_lg_u32 {S_IDX}, 4")
a("s_cbranch_scc1 L_noprefill")
a(f"s_lshl_b32 {S_T1}, {S_XCD}, 2")
a(f"s_add_u32 {S_T1}, {S_T1}, {S_W}")
a(f"s_mul_i32 {S_T1}, {S_T1}, {KV_BLK}")
a("v_mov_b64 v[108:109], -1")
a("v_mov_b64 v[110:111], -1")
for i in range(3):
    a(f"buffer_store_dwordx4 v[108:111], {V_L16}, {sWS}, {S_T1} offen offset:{i*1024} sc1")
a(f"s_add_u32 {S_T1}, {S_T1}, 3072")
a("v_mov_b32 v62, 0x3f803f80")
for i in range(3):
    d = 96 + 4 * i
    a(f"v_add_u32 v60, {64*i}, v0")
    a("v_mul_u32_u24 v61, 2731, v60")
    a("v_lshrrev_b32 v61, 16, v61")
    a("v_mul_u32_u24 v61, 24, v61")
    a("v_sub_u32 v60, v60, v61")
    a("v_and_b32 v60, 0x1b, v60")
    a("v_cmp_eq_u32 vcc, 18, v60")
    a(f"v_cndmask_b32 v{d}, -1, v62, vcc")
    a("v_cmp_ne_u32 vcc, 19, v60")
    a(f"v_cndmask_b32 v{d}, 0, v{d}, vcc")
    for r in range(1, 4):
        a(f"v_mov_b32 v{d+r}, v{d}")
    a(f"buffer_store_dwordx4 v[{d}:{d+3}], {V_L16}, {sWS}, {S_T1} offen offset:{i*1024} sc1")
a.label("L_noprefill")
a.restore(snap)

xd = [dma(f"v{XA+b}", sX, S_B0, s2 * 128, S_LDSW, (2 * s2 + b) * 1024, ("x", s2)) for s2 in range(10) for b in range(2)]
NX0 = opt("nx0", 2 if TOUCH == 1 else 6)
if TOUCH:
    touch_x()
if TOUCH != 1:
    emit(xd[:NX0])
srd(sWQ, 6, 640 * 1280)
if TOUCH:
    touch_w()
if TOUCH == 1:
    emit(xd[:NX0])
V_WQA = "v78"
XRD = 83
WQR = 85
V_KVR = "v92"
V_KVS = "v93"
QW = 124
QR = 129
S1 = 68


def addr_first():
    a("v_bfe_u32 v60, v0, 2, 2")
    a("v_and_b32 v61, 3, v0")
    a(f"v_and_b32 v62, 1, {V_G}")
    a(f"v_lshl_add_u32 v63, {V_G}, 3, v60")
    a("v_lshlrev_b32 v72, 1, v62")
    a("v_xor_b32 v72, v72, v61")
    a("v_mul_u32_u24 v73, 1280, v63")
    a(f"v_lshl_add_u32 {V_WQA}, v72, 4, v73")
    a(f"s_mul_i32 {S_T2}, {S_J}, 160")
    a(f"s_add_u32 {S_XO}, {S_B0}, {S_T2}")
    a(f"s_and_b32 {S_B1}, {S_T2}, 0xffc0")
    a(f"s_mul_i32 {S_T2}, {S_W}, {32*1280}")
    a(f"s_add_u32 {S_B1}, {S_B1}, {S_T2}")
    a(f"s_mul_i32 {S_B2}, {S_W}, 6144")
    a("v_mul_u32_u24 v63, 40, v63")
    a("v_lshl_add_u32 v63, v61, 3, v63")
    a(f"s_and_b32 {S_T3}, {S_J}, 1")
    a(f"s_lshl_b32 {S_T2}, {S_T3}, 5")
    a(f"s_add_u32 {S_T2}, {S_T2}, {L_WKV}")
    a(f"v_add_u32 {V_KVR}, {S_T2}, v63")
    a("v_lshrrev_b32 v63, 2, v0")
    a("v_lshlrev_b32 v63, 6, v63")
    a("v_lshl_add_u32 v63, v61, 3, v63")
    a(f"v_xor_b32 v72, {S_T3}, v62")
    a(f"v_lshl_add_u32 v{WQR+2}, v72, 5, v63")
    a(f"s_lshl_b32 {S_T3}, {S_T3}, 11")
    a(f"v_xor_b32 v72, 32, v{WQR+2}")
    a(f"v_add_u32 v{WQR+3}, {S_T3}, v72")
    for e in range(2):
        a(f"v_add_u32 v{WQR+e}, {L_WQ}, v{WQR+2+e}")
        a(f"v_add_u32 v{WQR+4+e}, {3*20480}, v{WQR+2+e}")
    a(f"v_lshrrev_b32 v63, 1, {V_T16}")
    a(f"v_lshlrev_b32 v72, 7, {V_T16}")
    a(f"v_add_u32 v72, {S_LDSW}, v72")
    a(f"v_xor_b32 v63, {V_G}, v63")
    a(f"v_lshl_add_u32 v{XRD}, v63, 4, v72")
    a(f"v_xor_b32 v{XRD+1}, 64, v{XRD}")
    a(f"v_mov_b64 v[{S1}:{S1+1}], 0")
    a(f"v_mov_b64 v[{S1+2}:{S1+3}], 0")
    a("v_mov_b64 v[94:95], 0")
    a(f"s_mov_b32 {S_C0}, 0x3f803f80")
    for i in range(3):
        a(f"v_mfma_f32_32x32x4_2b_bf16 {ar(32*i,32)}, v[94:95], v[94:95], 0")


def addr_second():
    a(f"v_lshlrev_b32 {V_L8}, 3, v0")
    a("v_bfe_u32 v60, v0, 2, 2")
    a("v_and_b32 v61, 3, v0")
    a(f"v_and_b32 v62, 1, {V_G}")
    a(f"s_lshl_b32 {S_W1L}, {S_W}, 13")
    a(f"s_add_u32 {S_W1L}, {S_W1L}, {L_W1S}")
    a("v_lshrrev_b32 v74, 5, v0")
    a("v_lshlrev_b32 v63, 10, v74")
    a("v_lshl_add_u32 v63, v60, 7, v63")
    a("v_lshl_add_u32 v63, v61, 3, v63")
    a("v_lshl_add_u32 v63, v62, 5, v63")
    a("v_lshrrev_b32 v73, 1, v60")
    a(f"s_lshr_b32 {S_T3}, {S_W}, 1")
    a(f"v_xor_b32 v73, {S_T3}, v73")
    a("v_lshl_add_u32 v63, v73, 6, v63")
    a(f"v_add_u32 v{W1R}, {S_W1L}, v63")
    a(f"v_xor_b32 v{W1R+1}, 64, v{W1R}")
    a("v_lshrrev_b32 v60, 3, v0")
    a("v_and_b32 v61, 7, v0")
    a("v_lshlrev_b32 v62, 2, v62")
    a("v_xor_b32 v61, v61, v62")
    a("v_mul_u32_u24 v63, 3072, v60")
    a(f"v_lshl_add_u32 {V_W1D}, v61, 4, v63")
    a("v_and_b32 v60, 3, v60")
    a("v_bfe_u32 v61, v0, 1, 2")
    a("v_and_b32 v62, 1, v0")
    a("v_lshlrev_b32 v62, 4, v62")
    a("v_lshl_add_u32 v63, v60, 2, v61")
    a("v_lshrrev_b32 v72, 1, v60")
    a("v_mad_u32_u24 v63, v72, 12, v63")
    a("v_lshl_add_u32 v63, v74, 3, v63")
    a("v_mul_u32_u24 v63, 1280, v63")
    a(f"v_add_u32 v{WOA}, v63, v62")
    a("v_mad_u32_u24 v63, v60, 40, v61")
    a("v_lshrrev_b32 v72, 1, v61")
    a("v_mad_u32_u24 v63, v72, 18, v63")
    a("v_lshl_add_u32 v63, v74, 1, v63")
    a("v_mul_u32_u24 v63, 1280, v63")
    a(f"v_add_u32 v{WOA+1}, v63, v62")
    a(f"s_and_b32 {S_T2}, {S_W}, 1")
    a(f"s_lshl_b32 {S_T2}, {S_T2}, 4")
    a(f"v_add_u32 v60, {S_T2}, {V_T16}")
    a(f"v_lshlrev_b32 v61, 9, {V_G}")
    a(f"v_lshl_add_u32 {V_OM}, v60, 4, v61")
    a(f"s_lshl_b32 {S_T3}, {S_T3}, 12")
    a(f"s_add_u32 {S_T3}, {S_T3}, {L_Q}")
    a("v_mul_u32_u24 v60, 88, v60")
    a(f"v_lshl_add_u32 v60, {V_G}, 3, v60")
    a(f"v_add_u32 v{QW}, {S_T3}, v60")
    a(f"v_mul_u32_u24 v60, {8192-80}, v74")
    a(f"v_add_u32 v{QW+1}, v{QW}, v60")
    a(f"s_lshl_b32 {S_T2}, {S_W}, 12")
    a(f"s_add_u32 {S_T2}, {S_T2}, {L_Q}")
    a("v_and_b32 v60, 31, v0")
    a("v_mul_u32_u24 v61, 88, v60")
    a(f"v_add_u32 v61, {S_T2}, v61")
    a(f"v_lshl_add_u32 v{QR}, v74, 4, v61")
    a(f"v_mad_u32_u24 v{QR+4}, v74, 40, v61")
    for sl in range(1, 4):
        a(f"v_xor_b32 v{QR+sl}, {sl<<12}, v{QR}")
        a(f"v_xor_b32 v{QR+4+sl}, {sl<<12}, v{QR+4}")
    a(f"v_mov_b32 {V_IDX}, 0xdddddddd")
    a("v_min_u32 v60, 23, v60")
    a("v_mul_u32_u24 v61, 384, v74")
    a("v_lshl_add_u32 v60, v60, 4, v61")
    a(f"v_add_u32 {V_VA}, 3072, v60")
    a(f"v_mul_u32_u24 v60, 1280, {V_T16}")
    a(f"v_lshl_add_u32 {V_XRA}, {V_G}, 3, v60")
    for sl in range(4):
        a(f"s_xor_b32 {S_T2}, {S_W}, {sl}")
        a(f"s_mul_i32 {S_T2}, {S_T2}, 6144")
        a(f"s_add_u32 {S_T2}, {S_T2}, {L_RED}")
        a(f"v_add_u32 {V_RR if sl == 0 else vr(V_RW+sl-1)}, {S_T2}, {V_L16}")
    a(f"s_lshl_b32 {S_KV0}, {S_XCD}, 2")
    a(f"s_add_u32 {S_KV0}, {S_KV0}, {S_W}")
    srd(sWO, 12, 640 * 1280)
    srd(sW1, 16, 2048 * 3072)
    a(f"s_min_u32 {S_D}, {S_IDX}, 29")
    a(f"s_mul_i32 {S_T2}, {S_D}, 52")
    a(f"s_lshr_b32 {S_T2}, {S_T2}, 8")
    a(f"s_mul_i32 {S_T3}, {S_T2}, 5")
    a(f"s_sub_u32 {S_D}, {S_D}, {S_T3}")
    a(f"s_and_b32 {S_T3}, {S_XCD}, 1")
    a(f"s_mul_i32 {S_T3}, {S_T3}, 5")
    a(f"s_add_u32 {S_D}, {S_D}, {S_T3}")
    a(f"s_lshr_b32 {S_T3}, {S_XCD}, 1")
    a(f"s_mul_i32 {S_T3}, {S_T3}, 6")
    a(f"s_add_u32 {S_F}, {S_T2}, {S_T3}")
    a(f"s_mul_i32 {S_W1G}, {S_W}, {512*3072}")
    a(f"s_lshl_b32 {S_T2}, {S_F}, 7")
    a(f"s_add_u32 {S_W1G}, {S_W1G}, {S_T2}")


a(f"s_cmp_lt_u32 {S_J}, 2")
a("s_cselect_b32 s40, s8, s10")
a("s_cselect_b32 s41, s9, s11")
a(f"s_cmp_lt_u32 {S_J}, 4")
a("s_cselect_b32 s42, 25600, 0")
a("s_mov_b32 s43, 0x20000")
addr_first()
snap = a.snapshot()
a(f"s_cmp_lg_u32 {S_IDX}, 4")
a("s_cbranch_scc1 L_nosignal")
a(f"s_waitcnt vmcnt({len(a.vm)})")
a("s_barrier")
a(f"s_cmp_lg_u32 {S_W}, 0")
a("s_cbranch_scc1 L_nosignal")
a(f"s_lshl_b32 {S_T2}, {S_XCD}, 2")
a(f"v_mov_b32 v60, {S_T2}")
a("v_mov_b32 v61, 1")
a("s_mov_b64 exec, 1")
a("global_store_dword v60, v61, s[26:27] sc1")
a("s_mov_b64 exec, -1")
a.label("L_nosignal")
a.restore(snap)

second = capture(addr_second)
N2 = opt("n2", 200)
emit(second[:N2])
second = second[N2:]
stamp("addr")
a(f"s_lshl_b32 {S_T1}, {S_W}, 10")
wkvd = [dma(V_L16, sWKV, S_T1, m * 4096, S_T1, L_WKV + m * 4096, "wkv") for m in range(6)]
wkvd.append(dma(V_L16, sWKV, None, 24576, None, L_WKV + 24576, "wkv"))


def wq_dma(st):
    base, off = (S_B2, L_WQ + st * 24576) if st < 2 else (S_LDSW, (st - 2) * 6144)
    return [dma(V_WQA, sWQ, S_B1, (st * 128 + 4 * q) * 1280 + 64 * seg, base, off + seg * 2048 + q * 1024, ("wq", st))
            for q in range(2) for seg in range(3)]


XF = 152


def stats(sig):
    L = []
    for r in range(4):
        R = XF + 4 * sig + r
        L += [f"v_dot2c_f32_bf16 v{S1+(r&1)}, {S_C0}, v{R}", f"v_dot2c_f32_bf16 v{S1+2+(r&1)}, v{R}, v{R}"]
    return L


AHEAD = opt("ahead", 10)
dq = xd[NX0:] + wkvd + wq_dma(0) + wq_dma(1)
emit(dq[:AHEAD - NX0])
dq = dq[AHEAD - NX0:]
for s2 in range(10):
    a.wait(vm=("x", s2))
    if s2 == 0:
        stamp("x0")
    for p in range(2):
        a(f"ds_read_b128 {vr(XF+4*(2*s2+p),4)}, v{XRD+p} offset:{s2*2048}", tag=("xf", s2))
    emit(dq[:1])
    if s2:
        a.wait(lg=("xf", s2 - 1))
        emit(stats(2 * s2 - 2))
    emit(dq[1:2])
    if s2:
        emit(stats(2 * s2 - 1))
    dq = dq[2:]
a.wait(lg="all")
a(f"s_load_dwordx8 s[{S_FL}:{S_FL+7}], s[26:27], 0")
dq += wq_dma(2) + wq_dma(3) + wq_dma(4)
emit(dq[:1])
emit(stats(18))
emit(dq[1:2])
emit(stats(19))
dq = dq[2:]
a(f"v_add_f32 v{S1}, v{S1}, v{S1+1}")
a(f"v_add_f32 v{S1+1}, v{S1+2}, v{S1+3}")
xreduce([S1, S1 + 1], 60)
a(f"v_mul_f32 v60, {f2u(1/640):#x}, v{S1}")
a(f"v_mul_f32 v61, {f2u(1/640):#x}, v{S1+1}")
a("v_fma_f32 v61, -v60, v60, v61")
a("v_max_f32 v61, 0, v61")
a(f"v_add_f32 v61, {f2u(1e-5):#x}, v61")
a(f"v_rsq_f32 v{S1}, v61")
a(f"v_mul_f32 v{S1+1}, -v60, v{S1}")
stamp("stats")
for sig in range(20):
    if sig % 3 != 2 and dq:
        emit(dq.pop(0))
    for R in range(XF + 4 * sig, XF + 4 * sig + 4):
        t = 60 + 2 * (R & 1)
        a(f"v_lshlrev_b32 v{t}, 16, v{R}")
        a(f"v_and_b32 v{t+1}, {S_MASK}, v{R}")
        a(f"v_pk_fma_f32 {vr(t,2)}, {vr(t,2)}, {vr(S1,2)}, {vr(S1,2)} op_sel:[0,0,1] op_sel_hi:[1,0,1]")
        a(f"v_cvt_pk_bf16_f32 v{R}, v{t}, v{t+1}")
a.wait(lg="all")
for i in range(1, 8):
    a(f"s_and_b32 s{S_FL}, s{S_FL}, s{S_FL+i}")
a(f"s_cmp_eq_u32 s{S_FL}, 1")
a("s_cbranch_scc0 L_spin1")
a.label("L_spin1_done")


def spin1():
    a.label("L_spin1")
    a(f"s_sub_u32 {S_RETRY}, {S_RETRY}, 1")
    a("s_cbranch_scc1 L_exit")
    a("v_and_b32 v60, 7, v0")
    a("v_lshlrev_b32 v60, 2, v60")
    a("global_load_dword v61, v60, s[26:27] sc1")
    a("s_waitcnt vmcnt(0)")
    a.vm = []
    a("v_cmp_ne_u32 vcc, 1, v61")
    a("s_cbranch_vccz L_spin1_done")
    a("s_sleep 4")
    a("s_branch L_spin1")


late.append(spin1)
stamp("norm")
a.wait(vm=("wq", 0))
a("s_barrier")

WB = 136
KACC = 52


NKD = 3
kvd, dq = dq[:NKD], dq[NKD:]


def kv_role(isk):
    rd = [(f"ds_read_b64_tr_b16 {ar(WB+4*sig+2*q,2)}, {V_KVR} offset:{(32*sig+4*q)*40}", ("kw", sig)) for sig in range(20) for q in range(2)]
    emit(rd[:14])
    rd = rd[14:]
    if isk:
        a(f"s_lshr_b32 {S_T2}, {S_W}, 1")
        a(f"s_lshl_b32 {S_T2}, {S_T2}, 10")
        a(f"v_and_b32 v60, 0x1ff, {V_OM}")
        a("v_lshrrev_b32 v61, 5, v0")
        a("v_lshl_add_u32 v60, v61, 9, v60")
        a(f"v_add_u32 {V_KVS}, {S_T2}, v60")
    else:
        a(f"s_mul_i32 {S_T2}, {S_W}, 768")
        a(f"s_and_b32 {S_T3}, {S_J}, 1")
        a(f"v_and_b32 v60, 2, {V_T16}")
        a("v_add_u32 v60, 16, v60")
        a(f"v_mad_u32_u24 v60, v60, {S_T3}, {V_T16}")
        a("v_lshrrev_b32 v61, 5, v0")
        a("v_mul_u32_u24 v61, 384, v61")
        a("v_lshl_add_u32 v60, v60, 4, v61")
        a(f"s_add_u32 {S_T2}, {S_T2}, 3072")
        a(f"v_add_u32 {V_KVS}, {S_T2}, v60")
    a.wait(lg=("kw", 0))
    d = list(kvd)
    for sig in range(20):
        w = ar(WB + 4 * sig, 4)
        x = vr(XF + 4 * sig, 4)
        c = "0" if sig == 0 else vr(KACC, 4)
        A, B = (w, x) if isk else (x, w)
        a(f"v_mfma_f32_16x16x32_bf16 {vr(KACC,4)}, {A}, {B}, {c}")
        if sig < 19:
            a.wait(lg=("kw", sig + 1))
        emit(rd[:2])
        rd = rd[2:]
        if sig in (2, 9, 14):
            emit(d.pop(0))


snap = a.snapshot()
a(f"s_cmp_gt_u32 {S_J}, 3")
a("s_cbranch_scc1 L_nokv")
a(f"s_cmp_gt_u32 {S_J}, 1")
a("s_cbranch_scc1 L_vrole")
kv_role(True)
a("s_branch L_kvfin")
a.label("L_vrole")
a.restore(snap)
kv_role(False)
a.label("L_kvfin")
a(f"s_mul_i32 {S_T1}, {S_TB}, {KV_BLK}")
a(f"s_lshl_b32 {S_T3}, {S_W}, 7")
a(f"s_add_u32 {S_T3}, {S_T3}, {S_T1}")
a(f"s_cmp_eq_u32 {S_J}, 3")
a(f"s_cselect_b32 {S_T2}, 0xf, 0xffff")
a("s_nop 2")
a(f"v_cvt_pk_bf16_f32 v60, v{KACC}, v{KACC+1}")
a(f"v_cvt_pk_bf16_f32 v61, v{KACC+2}, v{KACC+3}")
a(f"s_cmp_eq_u32 {S_J}, 1")
a("v_permlane16_swap_b32 v60, v62")
a("v_permlane16_swap_b32 v61, v63")
a("v_min_u32 v60, -2, v60")
a(f"s_mov_b32 exec_lo, {S_T2}")
a("s_cbranch_scc1 L_ktail")
a(f"s_mov_b32 exec_hi, {S_T2}")
a(f"buffer_store_dwordx4 v[60:63], {V_KVS}, {sWS}, {S_T1} offen sc1")
a("s_branch L_kvdone")
a.label("L_nokv")
a.restore(snap)
emit(kvd)
snap = a.snapshot()
a("s_branch L_kvdone")
a.label("L_ktail")
a("s_mov_b32 exec_hi, 0")
a(f"buffer_store_dwordx2 v[60:61], {V_L8}, {sWS}, {S_T3} offen offset:2048 sc1")
a.label("L_kvdone")
a("s_mov_b64 exec, -1")
a.restore(snap)
stamp("kv")

KVB = (96, 122)


def kv_pre(it):
    return [f"s_add_u32 {S_T0}, {S_KV0}, {4*it}", f"s_and_b32 {S_T0}, {S_T0}, 31", f"s_mul_i32 {S_KVB}, {S_T0}, {KV_BLK}"]


def kv_loads(buf, it):
    b = KVB[buf]
    t = ("kv", it)
    L = [(f"buffer_load_dwordx2 {vr(b+8,2)}, {V_L8}, {sWS}, {S_KVB} offen offset:2048 sc1", t)]
    for kt in range(2):
        L.append((f"buffer_load_dwordx4 {vr(b+4*kt,4)}, {V_L16}, {sWS}, {S_KVB} offen offset:{1024*kt} sc1", t))
    for kg in range(4):
        L.append((f"buffer_load_dwordx4 {vr(b+10+4*kg,4)}, {V_VA}, {sWS}, {S_KVB} offen offset:{768*kg} sc1", t))
    return L


def kv_check(buf, it, tmp):
    b = KVB[buf]
    return check_parts([b, b + 4, b + 8, b + 10, b + 14, b + 18, b + 22], tmp, kv_loads(buf, it), f"kv{it}")


QACC = 32


OV = 148


def wq_read(n):
    sig, ct = divmod(n, 5)
    st, wv = sig // 4, sig % 4
    if st < 2:
        ad, off = WQR, sig * 6144
    elif wv < 3:
        ad, off = WQR + 2, wv * 20480 + (st - 2) * 6144
    else:
        ad, off = WQR + 4, (st - 2) * 6144
    L = []
    if n == 60:
        L += [f"v_mfma_f32_32x32x4_2b_bf16 {vr(OV,32)}, v[94:95], v[94:95], 0"]
    if n % 20 == 0 and n:
        L += [lambda: a.wait(vm=("wq", st)), "s_barrier"]
    L += [(f"ds_read_b64_tr_b16 {ar(WB+4*(n%30)+2*q,2)}, v{ad+(ct&1)} offset:{off+(ct>>1)*2048+q*1024}", ("wf", n)) for q in range(2)]
    return L


LA = 7
for n in range(LA):
    emit(wq_read(n))
emit(second)
kvq = [kv_pre(0)] + [[x] for x in kv_loads(0, 0)]
a.wait(lg=("wf", 0))
for n in range(100):
    sig, ct = divmod(n, 5)
    c = "0" if sig == 0 else vr(QACC + 4 * ct, 4)
    a(f"v_mfma_f32_16x16x32_bf16 {vr(QACC+4*ct,4)}, {ar(WB+4*(n%30),4)}, {vr(XF+4*sig,4)}, {c}")
    if n < 99:
        a.wait(lg=("wf", n + 1))
    if n + LA < 100:
        emit(wq_read(n + LA))
    if n % 4 == 0 and dq:
        emit(dq.pop(0))
    if n >= opt("kvat", 76) and n % 2 == 0 and kvq:
        emit(kvq.pop(0))
assert not dq and not kvq
QS = math.log2(math.e) / math.sqrt(20.0)
a(f"s_mov_b32 {S_C0}, {f2u(QS):#x}")
a(f"s_mov_b32 {S_C1}, {f2u(QS):#x}")
for ct in range(5):
    b = QACC + 4 * ct
    a(f"v_pk_mul_f32 {vr(b,2)}, {vr(b,2)}, s[90:91]")
    a(f"v_pk_mul_f32 {vr(b+2,2)}, {vr(b+2,2)}, s[90:91]")
    a(f"v_cvt_pk_bf16_f32 v{b}, v{b}, v{b+1}")
    a(f"v_cvt_pk_bf16_f32 v{b+1}, v{b+2}, v{b+3}")
    a(f"ds_write_b64 v{QW+(ct==2)}, {vr(b,2)} offset:{32*ct+(8192-80 if ct > 2 else 0)}")
a.wait(lg="all")
a("s_barrier")
QA = 96
for sl in (1, 2, 3, 0):
    a(f"ds_read_b64 {ar(QA+10*sl+8,2)}, v{QR+4+sl} offset:32", tag=("q", sl))
    a(f"ds_read2_b64 {ar(QA+10*sl,4)}, v{QR+sl} offset0:0 offset1:1", tag=("q", sl))
    a(f"ds_read2_b64 {ar(QA+10*sl+4,4)}, v{QR+sl} offset0:5 offset1:6", tag=("q", sl))
a.wait(vm=("kv", 0))
emit(kv_check(0, 0, 60))
a.wait(lg=("q", 1))
stamp("q")

SB = (32, 64)
ORDER = (1, 2, 3, 0)
RCV = 96


def oacc(sl, tile):
    return ("v", OV + 16 * tile) if sl == 0 else ("a", 32 * (sl - 1) + 16 * tile)


def unit_of(u):
    it, r = divmod(u, 8)
    return it, ORDER[r // 2], r & 1


def M4(u, sbuf):
    it, sl, kt = unit_of(u)
    return f"v_mfma_f32_32x32x4_2b_bf16 {vr(sbuf,32)}, {vr(KVB[it&1]+8,2)}, {ar(QA+10*sl+8,2)}, 0 cbsz:1 abid:{kt}"


def M16(u, sbuf, tile):
    it, sl, kt = unit_of(u)
    d = vr(sbuf + 16 * tile, 16)
    return f"v_mfma_f32_32x32x16_bf16 {d}, {vr(KVB[it&1]+4*kt,4)}, {ar(QA+10*sl+4*tile,4)}, {d}"


def SM(u, sbuf, k):
    it, sl, kt = unit_of(u)
    tile, half = k >> 1, k & 1
    return f"v_smfmac_f32_32x32x32_bf16 {rr(oacc(sl,tile),16)}, {vr(KVB[it&1]+10+4*(2*kt+half),4)}, {vr(sbuf+8*k,8)}, {V_IDX}"


side = {}


def put(u, slot, items):
    side.setdefault((u, slot), []).extend(items)


SMS = ("p3", "s0", "s1", "s2")
free_slots = [(u, s) for u in range(64) for s in SMS]
used = set()


def take(u0):
    for us in free_slots:
        if us[0] >= u0 and us not in used:
            used.add(us)
            return us
    raise RuntimeError("no slot")


for it in range(7):
    pre = kv_pre(it + 1)
    u = 8 * it
    used.add((u, "p3"))
    put(u, "p3", pre[:2])
    put(u, "s0", pre[2:])
    for x in kv_loads((it + 1) & 1, it + 1):
        put(*take(u), [x])
    used.add((u + 6, "s2"))
    used.add((u + 7, "p3"))
    ck = kv_check((it + 1) & 1, it + 1, 27)
    put(u + 6, "s2", [lambda it=it: a.wait(vm=("kv", it + 1))] + ck[:-1])
    put(u + 7, "p3", ck[-1:])
put(0, "a", [lambda: a.wait(lg="all")])


def w1reg(k):
    if k < 15:
        return ("a", 136 + 8 * k)
    if k < 24:
        return ("v", 184 + 8 * (k - 15))
    return ("a", 72 + 8 * (k - 24))


def w1_dma(k, base=S_W1L, off=None):
    off = (k % 4) * 2048 if off is None else off
    return [dma(V_W1D, sW1, S_W1G, (16 * k + 8 * b) * 3072, base, off + b * 1024, ("w1", k)) for b in range(2)]


def w1_read(k, ad=W1R, off=None):
    off = (k % 4) * 2048 if off is None else off
    return [(f"ds_read_b64_tr_b16 {rr(w1reg(k),2,4*b+2*q)}, v{ad+b} offset:{off+q*512}", ("w1f", k)) for b in range(2) for q in range(2)]


for k in range(28):
    u = 2 + 2 * k
    d = w1_dma(k)
    if k >= 4:
        d[0] = [lambda k=k: a.wait(lg=("w1f", k - 4))] + d[0]
    for x in d:
        us = take(u)
        assert us[0] <= u + 2
        put(*us, x)
    if k < 24:
        r = w1_read(k)
        put(u + 7, "a", [lambda k=k: a.wait(vm=("w1", k))] + r[:2])
        put(u + 7, "b", r[2:])
put(1, "a", ["v_mov_b64 v[28:29], -1"])
put(1, "b", ["v_mov_b64 v[30:31], -1"])
put(0, "b", [f"s_mul_i32 {S_PF}, s2, 28672", f"s_mul_i32 {S_T1}, {S_W}, 7168"])
put(1, "a", [f"s_add_u32 {S_PF}, {S_PF}, {S_T1}"])
for i in range(7):
    put(*take(2 + opt("pfstep", 0) * i), [f"s_add_u32 {S_T0}, {S_PF}, {BIG + i*1024}",
                   (f"buffer_store_dwordx4 v[28:31], {V_L16}, {sWS}, {S_T0} offen sc1", "pf")])


def arrive():
    assert "pf" not in a.vm
    sn = a.snapshot()
    a("s_barrier")
    a(f"s_cmp_lg_u32 {S_W}, 0")
    a("s_cbranch_scc1 L_noarrive")
    a(f"s_lshl_b32 {S_T0}, {S_TB}, 2")
    a(f"s_add_u32 {S_T0}, {S_T0}, 64")
    a(f"v_mad_u32_u24 v28, v0, {S_T0}, 64")
    a(f"v_mul_u32_u24 v29, {S_FAST}, v0")
    a("v_lshlrev_b32 v29, v29, 1")
    a("s_mov_b64 exec, 3")
    a("global_atomic_add v28, v29, s[26:27]")
    a("s_mov_b64 exec, -1")
    a.label("L_noarrive")
    a.restore(sn)


put(*take(opt("arrive", 18)), [arrive])
put(2, "a", [f"s_mul_i32 {S_B1}, {S_J}, 160"])
put(2, "b", [f"s_mul_i32 {S_T1}, {S_W}, {40*1280}"])
put(3, "a", [f"s_add_u32 {S_B0}, {S_B1}, {S_T1}"])
put(3, "b", [f"s_mul_i32 {S_T1}, {S_W}, {160*1280}"])
put(4, "a", [f"s_add_u32 {S_B1}, {S_B1}, {S_T1}"])
put(4, "b", [f"s_mul_i32 {S_B2}, {S_W}, 5120"])
put(5, "a", [f"s_getreg_b32 {S_FAST}, hwreg(HW_REG_XCC_ID, 0, 3)"])
put(5, "b", [f"s_lshl_b32 {S_FAST}, {S_FAST}, 2"])
for i in range(5):
    for ct in range(5):
        if i < 4:
            d = dma(f"v{WOA}", sWO, S_B0, i * 160 * 1280 + 32 * ct, S_B2, L_WO + i * 20480 + ct * 1024, "wo")
        else:
            d = dma(f"v{WOA+1}", sWO, S_B1, 16 * 1280 + 32 * ct, S_B2, L_WO + 16 * 5120 + ct * 1024, "wo")
        us = take(6 + 7 * i)
        assert us[0] < 46
        put(*us, d)
for ct in range(5):
    us = take(42)
    assert us[0] < 48
    put(*us, [(f"buffer_load_dwordx2 {vr(XR+2*ct,2)}, {V_XRA}, {sX}, {S_XO} offen offset:{32*ct}", "xr")])


def later_scalars():
    a(f"s_mul_i32 {S_T3}, {S_TB}, {O_BLK}")
    a(f"s_add_u32 {S_T3}, {S_T3}, {O_BASE}")
    a(f"s_and_b32 {S_T1}, {S_W}, 1")
    a(f"s_lshl_b32 {S_T1}, {S_T1}, 4")
    a(f"s_lshr_b32 {S_T2}, {S_W}, 1")
    a(f"s_add_u32 {S_T1}, {S_T1}, {S_T2}")
    a(f"s_lshl_b32 {S_OPM}, {S_J}, 1")
    a(f"s_add_u32 {S_T1}, {S_T1}, {S_OPM}")
    a(f"s_lshl_b32 {S_OPM}, {S_T1}, 11")
    a(f"s_add_u32 {S_OPM}, {S_OPM}, {S_T3}")
    a(f"s_lshl_b32 {S_OPL}, {S_T1}, 9")
    a(f"s_add_u32 {S_OPL}, {S_OPL}, {S_T3}")
    a(f"s_add_u32 {S_OPL}, {S_OPL}, 65536")
    a(f"s_lshl_b32 {S_OLM}, {S_T2}, 15")
    a(f"s_add_u32 {S_OLM}, {S_OLM}, {S_T3}")
    a(f"s_lshl_b32 {S_OLL}, {S_T2}, 13")
    a(f"s_add_u32 {S_OLL}, {S_OLL}, {S_T3}")
    a(f"s_add_u32 {S_OLL}, {S_OLL}, 65536")
    a(f"s_lshl_b32 {S_T1}, {S_TB}, 2")
    a(f"s_add_u32 {S_T1}, {S_T1}, {S_W}")
    a(f"s_lshl_b32 {S_T1}, {S_T1}, 10")
    a(f"s_add_u32 {S_STB}, {S_T1}, {ST_BASE}")
    a(f"s_add_u32 {S_HNB}, {S_T1}, {HN_BASE}")
    a(f"s_lshl_b32 {S_STW}, {S_J}, 7")
    a(f"s_add_u32 {S_STW}, {S_STW}, {S_STB}")
    a(f"s_mul_i32 {S_W2G}, {S_W}, {384*4096}")
    a(f"s_lshl_b32 {S_T1}, {S_TB}, 7")
    a(f"s_add_u32 {S_W2G}, {S_W2G}, {S_T1}")
    a(f"s_mul_i32 {S_LW}, {S_W}, 25600")
    a(f"s_mul_i32 {S_REDW}, {S_W}, 6144")
    a(f"s_add_u32 {S_REDW}, {S_REDW}, {L_RED}")
    srd(sW2, 20, 1536 * 4096)
    srd(sOUT, 24, 2048 * 1280)


ls = capture(later_scalars)
for i, x in enumerate(ls):
    assert 6 + 2 * (i // 2) < 44
    put(6 + 2 * (i // 2), "ab"[i & 1], [x])
put(44, "a", ["v_lshlrev_b32 v28, 12, v0"])
put(44, "b", ["v_mul_u32_u24 v29, 3072, v0"])
put(46, "a", [f"s_mul_i32 {S_T1}, {S_J}, {48*4096}"])
put(46, "b", [f"s_add_u32 {S_T1}, {S_T1}, {S_W2G}"])
put(*take(47), ["s_mov_b32 exec_hi, 0xffff", (f"buffer_load_dword v180, v28, {sW2}, {S_T1} offen", "touch"), "s_mov_b32 exec_hi, -1"])
put(*take(51), [f"s_add_u32 {S_T0}, {S_W1G}, {448*3072}", (f"buffer_load_dword v181, v29, {sW1}, {S_T0} offen", "touch")])
put(54, "a", [f"s_lshl_b32 {S_T1}, {S_TB}, 2"])
put(54, "b", [f"s_add_u32 {S_T1}, {S_T1}, 128"])
put(56, "a", [lambda: a.wait(lg="all"), f"s_load_dword {S_CNT}, s[26:27], 64"])
put(56, "b", [f"s_load_dword {S_GRP}, s[26:27], {S_T1}"])
put(57, "a", [f"s_lshl_b32 {S_FAST}, 8, {S_FAST}"])
put(57, "s2", [lambda: a.wait(lg="all")])


def red_write(sl):
    return [(f"ds_write_b128 v{V_RW+sl-1}, {rr(oacc(sl,t),4,4*i)} offset:{t*3072+i*1024}", "rw") for t in range(2) for i in range(3)]


rds = [(f"ds_read_b128 {vr(RCV+4*i,4)}, {V_RR} offset:{i*1024}", "rr") for i in range(6)]
radd = [f"v_pk_add_f32 {vr(OV+16*t+r,2)}, {vr(OV+16*t+r,2)}, {vr(RCV+12*t+r,2)}" for t in range(2) for r in range(0, 12, 2)]
for sl in (1, 2, 3):
    u = 56 + 2 * sl
    if sl > 1:
        put(u, "p3", ["s_barrier"])
    for x, slot in zip(red_write(sl), ("p3", "s0", "s1", "a", "b", "s2")):
        put(u, slot, [x])
    put(u + 1, "s0", [lambda: a.wait(lg="all"), "s_barrier"] + rds[:3])
    put(u + 1, "s1", ["s_nop 0"] + rds[3:])
    if sl < 3:
        put(u + 1, "s2", [lambda: a.wait(lg="all")] + radd)

a(M4(0, SB[0]))
a(M16(0, SB[0], 0))
a(M16(0, SB[0], 1))
for u in range(64):
    A, B = SB[u & 1], SB[(u + 1) & 1]
    e = iter(range(32))

    def ex(n):
        for _ in range(n):
            k = next(e)
            a(f"v_exp_f32 v{A+k}, v{A+k}")

    def sd(slot):
        emit(side.pop((u, slot), []))
    last = u == 63
    if u % 8 == 0 and u:
        stamp(f"it{u//8}")
    ex(2)
    if u:
        a(SM(u - 1, B, 3))
    sd("p3")
    ex(3)
    if not last:
        a(M4(u + 1, B))
    ex(8)
    a(SM(u, A, 0))
    sd("s0")
    ex(5)
    a(SM(u, A, 1))
    sd("s1")
    ex(3)
    if not last:
        a(M16(u + 1, B, 0))
    sd("a")
    ex(3)
    if not last:
        a(M16(u + 1, B, 1))
    sd("b")
    ex(3)
    a(SM(u, A, 2))
    sd("s2")
    ex(5)
assert not side, side.keys()
OP = 136
LO, HI = (127 - 60) << 23, (127 + 60) << 23


def o_finish(t):
    for r in range(0, 12, 2):
        a(f"v_pk_add_f32 {vr(OV+16*t+r,2)}, {vr(OV+16*t+r,2)}, {vr(RCV+12*t+r,2)}")
    a(f"v_rcp_f32 v32, v{OV+16*t+10}")
    a(f"v_subrev_u32 v{36+t}, {LO:#x}, v{OV+16*t+10}")
    for r in range(0, 10, 2):
        a(f"v_pk_mul_f32 {vr(OV+16*t+r,2)}, {vr(OV+16*t+r,2)}, v[32:33] op_sel_hi:[1,0]")
    for r in range(4):
        a(f"v_cvt_pk_bf16_f32 v{OP+4*t+r}, v{OV+16*t+2*r}, v{OV+16*t+2*r+1}")
    a(f"v_cvt_pk_bf16_f32 v{OP+8+t}, v{OV+16*t+8}, v{OV+16*t+9}")
    a(f"v_min_u32 v{OP+4*t}, -2, v{OP+4*t}")


a.wait(lg="all")
a(SM(63, SB[1], 3))
a.label("L_attn_sum")
o_finish(0)
o_finish(1)
a("v_max_u32 v36, v36, v37")
a(f"v_cmp_lt_u32 vcc, {HI-LO:#x}, v36")
a(f"v_permlane32_swap_b32 v{OP+8}, v{OP+10}")
a(f"v_permlane32_swap_b32 v{OP+9}, v{OP+11}")
a(f"v_min_u32 v{OP+8}, -2, v{OP+8}")
stamp("attn")
a("s_cmp_lg_u64 vcc, 0")
a(f"s_cselect_b32 {S_T2}, 1, 0")
if FORCE_FB:
    a(f"s_mov_b32 {S_T2}, 1")
a(f"s_cmp_ge_u32 {S_CNT}, 256")
a("s_cbranch_scc0 L_spin2")
a.label("L_spin2_done")


def spin2():
    a.label("L_spin2")
    a(f"s_sub_u32 {S_RETRY}, {S_RETRY}, 1")
    a("s_cbranch_scc1 L_exit")
    a("v_mov_b32 v36, 64")
    a("global_load_dword v37, v36, s[26:27] sc1")
    a("s_waitcnt vmcnt(0)")
    a.vm = []
    a(f"v_readfirstlane_b32 {S_CNT}, v37")
    a("s_nop 1")
    a(f"s_cmp_ge_u32 {S_CNT}, 256")
    a("s_cbranch_scc1 L_spin2_done")
    a("s_sleep 4")
    a("s_branch L_spin2")


late.append(spin2)


def o_pub(fl, tag):
    return [(f"buffer_store_dwordx4 {vr(OP,4)}, {V_L16}, {sWS}, {S_OPM} offen {fl}", tag),
            (f"buffer_store_dwordx4 {vr(OP+4,4)}, {V_L16}, {sWS}, {S_OPM} offen offset:1024 {fl}", tag),
            "s_mov_b32 exec_hi, 0",
            (f"buffer_store_dwordx4 {vr(OP+8,4)}, {V_L16}, {sWS}, {S_OPL} offen {fl}", tag),
            "s_mov_b32 exec_hi, -1"]


def two_ways(pub, tag, name):
    if not FASTHOP:
        emit(pub("sc1", tag))
        return
    a(f"s_cmp_lg_u32 {S_GRP}, {S_FAST}")
    a(f"s_cbranch_scc1 L_wt{name}")
    emit(pub("", tag))
    a.label(f"L_wtd{name}")

    def ool():
        a.label(f"L_wt{name}")
        emit(pub("sc1", None))
        a("s_waitcnt vmcnt(0)")
        a.vm = []
        a(f"s_branch L_wtd{name}")
    late.append(ool)


a(f"s_andn2_b32 {S_T2}, {S_T2}, {S_FBI}")
a("s_cbranch_scc1 L_nopub")
two_ways(o_pub, "opub", "o")
a.label("L_nopub")
a(f"s_lshl_b32 {S_T0}, {S_W}, 2")
a(f"s_add_u32 {S_T0}, {S_T0}, {L_FLAG}")
a(f"v_mov_b32 v36, {S_T0}")
a(f"v_mov_b32 v37, {S_T2}")
a("ds_write_b32 v36, v37")
a(f"v_mov_b32 v36, {L_FLAG}")
a.wait(lg="all")
a("s_barrier")
a("ds_read_b128 v[28:31], v36")
H = 112
for ct in range(5):
    s0, s1 = XR + 2 * ct, XR + 2 * ct + 1
    a(f"v_lshlrev_b32 v{H+4*ct}, 16, v{s0}")
    a(f"v_and_b32 v{H+4*ct+1}, {S_MASK}, v{s0}")
    a(f"v_lshlrev_b32 v{H+4*ct+2}, 16, v{s1}")
    a(f"v_and_b32 v{H+4*ct+3}, {S_MASK}, v{s1}")
a.wait(lg="all")
a("v_or3_b32 v28, v28, v29, v30")
a("v_or_b32 v28, v28, v31")
a("v_cmp_ne_u32 vcc, 0, v28")
a("s_cbranch_vccnz L_fallback")


def fallback():
    MX = 124
    a.label("L_fallback")
    a("s_waitcnt vmcnt(0) lgkmcnt(0)")
    a.vm = []
    a.lg = []
    a(f"s_mov_b32 {S_FBI}, 1")
    for k in range(8):
        a(f"v_mov_b32 v{MX+k}, 0xff800000")
    for ps in range(2):
        a(f"s_mov_b32 {S_T3}, 0")
        a.label(f"L_fb{ps}")
        a(f"s_add_u32 {S_T0}, {S_KV0}, {S_T3}")
        a(f"s_and_b32 {S_T0}, {S_T0}, 31")
        a(f"s_mul_i32 {S_KVB}, {S_T0}, {KV_BLK}")
        a("s_nop 15")
        emit(kv_loads(0, 0))
        a.wait(vm="all")
        for r in range(8):
            sl = ORDER[r // 2]
            S = SB[0]
            a(M4(r, S))
            a(M16(r, S, 0))
            a(M16(r, S, 1))
            if ps == 0:
                for t in range(2):
                    m = MX + 2 * sl + t
                    for k in range(0, 16, 2):
                        a(f"v_max3_f32 v{m}, v{m}, v{S+16*t+k}, v{S+16*t+k+1}")
            else:
                for k in range(32):
                    a(f"v_sub_f32 v{S+k}, v{S+k}, v{MX+2*sl+(k>>4)}")
                for k in range(32):
                    a(f"v_exp_f32 v{S+k}, v{S+k}")
                for k in range(4):
                    a(SM(r, S, k))
        a(f"s_add_u32 {S_T3}, {S_T3}, 4")
        a(f"s_cmp_lt_u32 {S_T3}, 32")
        a(f"s_cbranch_scc1 L_fb{ps}")
        if ps == 0:
            for k in range(8):
                a(f"v_mov_b32 v64, v{MX+k}")
                a(f"v_permlane32_swap_b32 v{MX+k}, v64")
                a(f"v_max_f32 v{MX+k}, v{MX+k}, v64")
            a("v_and_b32 v64, 31, v0")
            a("v_lshlrev_b32 v64, 2, v64")
            a(f"s_lshl_b32 {S_T1}, {S_W}, 10")
            for sl in range(4):
                a(f"s_xor_b32 {S_T0}, {S_W}, {sl}")
                a(f"s_lshl_b32 {S_T0}, {S_T0}, 8")
                a(f"s_add_u32 {S_T0}, {S_T0}, {L_RED}")
                a(f"v_add_u32 v{66+sl}, {S_T0}, v64")
                a(f"v_add_u32 v65, {S_T1}, v{66+sl}")
                a(f"ds_write_b32 v65, v{MX+2*sl}")
                a(f"ds_write_b32 v65, v{MX+2*sl+1} offset:128")
            a.wait(lg="all")
            a("s_barrier")
            for sl in range(4):
                for t in range(2):
                    for wv in range(4):
                        a(f"ds_read_b32 v{72+wv}, v{66+sl} offset:{wv*1024+t*128}")
                    a.wait(lg="all")
                    a(f"v_max3_f32 v72, v72, v73, v74")
                    a(f"v_max_f32 v{MX+2*sl+t}, v72, v75")
            a("s_barrier")
            for r in range(96):
                a(f"v_accvgpr_write_b32 a{r}, 0")
            for r in range(32):
                a(f"v_mov_b32 v{OV+r}, 0")
    a("s_nop 15")
    for sl in (1, 2, 3):
        emit(red_write(sl))
        a.wait(lg="all")
        a("s_barrier")
        emit(rds)
        a.wait(lg="all")
        if sl < 3:
            emit(radd)
            a("s_barrier")
    a("s_branch L_attn_sum")


late.append(fallback)

OF = 32
V_WO1 = "v27"
WOF = 0
NWO = 34


def o_loads(bt, st=S_T1):
    L = []
    for m in range(4 * bt, 4 * bt + 4):
        g = []
        if m % 2 == 0:
            g.append(f"s_add_u32 {st}, {S_OLM}, {m*2048}" if bt < 4 else f"s_add_u32 {st}, {S_OLL}, {(m-16)*2048}")
        g.append((f"buffer_load_dwordx4 {vr(OF+4*m,4)}, {V_OM}, {sWS}, {st} offen offset:{(m%2)*2048} sc1", ("o", bt)))
        L.append(g)
    return L


def wo_read(n):
    sig, ct = divmod(n, 5)
    ad, off = (V_L8, sig * 5120) if sig < 12 else (V_WO1, (sig - 12) * 5120)
    return [(f"ds_read_b64_tr_b16 {ar(WOF+4*(n%NWO)+2*q,2)}, {ad} offset:{off+ct*1024+q*512}", ("wof", n)) for q in range(2)]


def o_check(bt):
    return [lambda: a.wait(vm=("o", bt))] + check_parts([OF + 4 * s for s in range(4 * bt, 4 * bt + 4)], 28, o_loads(bt, S_RT), f"o{bt}")


a(f"v_add_u32 {V_WO1}, {12*5120}, {V_L8}")
ol = [g for bt in range(5) for g in o_loads(bt)]
pre = [wo_read(n) for n in range(NWO - 1)]
if not FASTHOP:
    emit(pre[:16])
    pre = pre[16:]
    a.wait(vm="opub")
stamp("oack")
pre = weave(ol[:10], pre, 3)
emit(pre)
ol = ol[10:]
tail = [x for k in range(28, 31) for x in w1_dma(k, S_REDW, (k - 28) * 2048)]
nread = NWO - 1
emit(o_check(0))
stamp("o0")
a.wait(lg=("wof", 0))
ck = []
for n in range(100):
    sig, ct = divmod(n, 5)
    a(f"v_mfma_f32_16x16x32_bf16 {vr(H+4*ct,4)}, {ar(WOF+4*(n%NWO),4)}, {vr(OF+4*sig,4)}, {vr(H+4*ct,4)}")
    w = a.wait_text(lg=("wof", n + 1)) if n < 99 else None
    if w:
        a(w)
    if n % 20 == 14 and n < 80:
        ck = o_check(n // 20 + 1)
        emit(ck[:2])
        ck = ck[2:]
    elif ck and n % 20 != 17:
        emit(ck[:1])
        ck = ck[1:]
    elif n % 4 == 0 and ol:
        emit(ol.pop(0))
    elif n % 5 == 0 and not ol and tail and n > 55:
        emit(tail.pop(0))
    elif nread < 100:
        if not w:
            a("s_nop 0")
        emit(wo_read(nread))
        nread += 1
    if nread < 100 and nread - n <= 7:
        emit(wo_read(nread))
        nread += 1
    assert nread == 100 or nread - n > 4
    assert n % 20 != 19 or not ck
assert not ol and not tail and nread == 100
a(f"v_pk_add_f32 v[60:61], {vr(H,2)}, {vr(H+2,2)}")
a(f"v_pk_mul_f32 v[62:63], {vr(H,2)}, {vr(H,2)}")
a(f"v_pk_fma_f32 v[62:63], {vr(H+2,2)}, {vr(H+2,2)}, v[62:63]")
for r in range(4, 20, 2):
    a(f"v_pk_add_f32 v[60:61], v[60:61], {vr(H+r,2)}")
    a(f"v_pk_fma_f32 v[62:63], {vr(H+r,2)}, {vr(H+r,2)}, v[62:63]")
a("v_add_f32 v60, v60, v61")
a("v_add_f32 v61, v62, v63")
xreduce([60, 61], 64)
a("v_min_u32 v61, -2, v61")


def st_pub(fl, tag):
    return ["s_mov_b64 exec, 0xffff",
            (f"buffer_store_dwordx2 v[60:61], {V_L8}, {sWS}, {S_STW} offen {fl}", tag),
            "s_mov_b64 exec, -1"]


two_ways(st_pub, "stpub", "st")
stamp("oproj")
st_ld = [(f"buffer_load_dwordx2 v[64:65], {V_L8}, {sWS}, {S_STB} offen sc1", "st"),
         (f"buffer_load_dwordx2 v[66:67], {V_L8}, {sWS}, {S_STB} offen offset:512 sc1", "st")]
for k in range(24, 28):
    emit(w1_read(k))
V_IW, V_IR, HNA = "v68", "v69", 70
a(f"v_mul_u32_u24 v76, 176, {V_T16}")
a(f"v_lshl_add_u32 v76, {V_G}, 3, v76")
a(f"v_add_u32 {V_IW}, {S_W1L}, v76")
a("v_bfe_u32 v76, v0, 2, 2")
a(f"v_and_b32 v77, 1, {V_G}")
a("v_lshl_add_u32 v76, v77, 3, v76")
a("v_mul_u32_u24 v76, 176, v76")
a(f"v_lshrrev_b32 v78, 1, {V_G}")
a("v_lshl_add_u32 v76, v78, 5, v76")
a("v_and_b32 v79, 3, v0")
a("v_lshl_add_u32 v76, v79, 3, v76")
a(f"v_add_u32 {V_IR}, {S_W1L}, v76")
if not FASTHOP:
    a.wait(vm="stpub")
stamp("stack")
emit(st_ld)
a(f"s_mul_i32 {S_T1}, {S_J}, 5")
a("v_lshlrev_b32 v77, 9, v77")
a(f"v_lshl_add_u32 v77, {V_T16}, 4, v77")
a(f"v_add_u32 v78, {S_T1}, v78")
for i in range(3):
    a(f"v_add_u32 v79, {2*i}, v78")
    a("v_lshrrev_b32 v80, 1, v79")
    a("v_and_b32 v79, 1, v79")
    a("v_lshl_add_u32 v80, v80, 17, v77")
    a(f"v_lshl_add_u32 v{HNA+i}, v79, 8, v80")
a(f"s_sub_u32 {S_T1}, {S_W1L}, {S_REDW}")
a(f"v_subrev_u32 v74, {S_T1}, v{W1R}")
a(f"v_subrev_u32 v75, {S_T1}, v{W1R+1}")
a.wait(vm=("w1", 30))
for k in range(28, 31):
    emit(w1_read(k, 74, (k - 28) * 2048))
a.wait(vm="st")
emit(check_parts([65, 67], 28, st_ld, "st"))
a("v_add_f32 v64, v64, v66")
a("v_add_f32 v65, v65, v67")
xreduce([64, 65], 66)
a(f"v_mul_f32 v64, {f2u(1/640):#x}, v64")
a(f"v_mul_f32 v65, {f2u(1/640):#x}, v65")
a("v_fma_f32 v65, -v64, v64, v65")
a("v_max_f32 v65, 0, v65")
a(f"v_add_f32 v66, {f2u(1e-5):#x}, v65")
a(f"v_fmac_f32 v65, {f2u(1e-5):#x}, v66")
a("v_rsq_f32 v62, v65")
a("v_mul_f32 v63, -v64, v62")
for ct in range(5):
    for p in range(2):
        a(f"v_pk_fma_f32 {vr(32+4*ct+2*p,2)}, {vr(H+4*ct+2*p,2)}, v[62:63], v[62:63] op_sel:[0,0,1] op_sel_hi:[1,0,1]")
    a(f"v_cvt_pk_bf16_f32 v{32+4*ct}, v{32+4*ct}, v{33+4*ct}")
    a(f"v_cvt_pk_bf16_f32 v{33+4*ct}, v{34+4*ct}, v{35+4*ct}")
    a(f"ds_write_b64 {V_IW}, {vr(32+4*ct,2)} offset:{32*ct}")
for i in range(3):
    for q in range(2):
        a(f"ds_read_b64_tr_b16 {vr(76+4*i+2*q,2)}, {V_IR} offset:{q*4*176+i*64}", tag=("hi", i))
for i in range(3):
    a.wait(lg=("hi", i))
    a(f"v_min_u32 v{76+4*i}, -2, v{76+4*i}")
    if i == 2:
        a("s_mov_b32 exec_hi, 0")
    a(f"buffer_store_dwordx4 {vr(76+4*i,4)}, v{HNA+i}, {sWS}, {S_HNB} offen sc1", tag="hnpub")
a("s_mov_b32 exec_hi, -1")
stamp("hnpub")
a("s_barrier")

V_W2D = "v8"
W2R = 9
INB = 102400
RW = 13
V_RIN = "v16"
NW2 = 6


def p3_addr():
    a("v_lshrrev_b32 v88, 3, v0")
    a("v_and_b32 v89, 7, v0")
    a(f"v_lshlrev_b32 v90, 1, {V_G}")
    a("v_xor_b32 v89, v89, v90")
    a("v_lshlrev_b32 v88, 12, v88")
    a(f"v_lshl_add_u32 {V_W2D}, v89, 4, v88")


def p3_addr2():
    a("v_bfe_u32 v88, v0, 2, 3")
    a("v_lshrrev_b32 v89, 1, v88")
    a("v_lshrrev_b32 v90, 5, v0")
    a("v_lshlrev_b32 v90, 11, v90")
    a("v_lshl_add_u32 v90, v88, 7, v90")
    a("v_and_b32 v91, 3, v0")
    a("v_lshl_add_u32 v90, v91, 3, v90")
    a(f"v_add_u32 v90, {S_LW}, v90")
    a(f"v_xor_b32 v89, {S_W}, v89")
    for b in range(4):
        a(f"v_xor_b32 v91, {b}, v89")
        a(f"v_lshl_add_u32 v{W2R+b}, v91, 5, v90")
    for dl in range(4):
        a(f"s_xor_b32 {S_T1}, {S_W}, {dl}")
        a(f"s_mul_i32 {S_T1}, {S_T1}, 15360")
        a(f"s_add_u32 {S_T1}, {S_T1}, {INB + max(dl-1,0)*5120}")
        a(f"v_add_u32 {V_RIN if dl == 0 else vr(RW+dl-1)}, {S_T1}, {V_L16}")


def w2_dma(k):
    return [dma(V_W2D, sW2, S_W2G, (32 * k + 8 * b) * 4096, S_LW, (k % NW2) * 4096 + b * 1024, ("w2", k)) for b in range(4)]


def w2reg(k):
    if k < 7:
        return ("a", 136 + 16 * k)
    if k < 11:
        return ("v", 192 + 16 * (k - 7))
    return ("a", 72)


def w2_read(k):
    return [(f"ds_read_b64_tr_b16 {rr(w2reg(k),2,4*b+2*q)}, v{W2R+b} offset:{(k%NW2)*4096+q*1024}", ("w2f", k))
            for b in range(4) for q in range(2)]


p3_addr()
a(f"s_cmp_gt_u32 {S_IDX}, 29")
a("s_cbranch_scc1 L_p3idle")
B1 = 148
ACCO = 132
HS = 32


def p3_addr3():
    p3_addr2()
    a(f"s_lshr_b32 {S_T1}, {S_W}, 1")
    a(f"s_lshl_b32 {S_T1}, {S_T1}, 6")
    a(f"s_lshl_b32 {S_T2}, {S_F}, 7")
    a(f"s_add_u32 {S_T1}, {S_T1}, {S_T2}")
    a("v_lshrrev_b32 v88, 5, v0")
    a("v_lshlrev_b32 v88, 3, v88")
    a(f"v_add_u32 v88, {S_T1}, v88")
    for i in range(4):
        a(f"global_load_dwordx2 {vr(B1+2*i,2)}, v88, s[18:19] offset:{16*i}", tag="b1")
    a(f"s_and_b32 {S_T1}, {S_W}, 1")
    a(f"s_lshl_b32 {S_T2}, {S_D}, 1")
    a(f"s_add_u32 {S_T3}, {S_T1}, {S_T2}")
    a(f"s_lshl_b32 {S_T1}, {S_T3}, 17")
    a(f"s_lshl_b32 {S_T2}, {S_W}, 15")
    a(f"s_add_u32 {S_T1}, {S_T1}, {S_T2}")
    a(f"s_xor_b32 {S_T2}, {S_T1}, 0x20000")
    a(f"s_add_u32 {S_B0}, {S_T1}, {HN_BASE}")
    a(f"s_add_u32 {S_B1}, {S_T2}, {HN_BASE}")
    a("v_bfe_u32 v88, v0, 4, 1")
    a("v_mul_u32_u24 v88, 49152, v88")
    a("v_lshrrev_b32 v89, 5, v0")
    a("v_lshl_add_u32 v88, v89, 8, v88")
    a(f"v_lshl_add_u32 v17, {V_T16}, 4, v88")
    a(f"s_mul_i32 {S_T1}, {S_T3}, 96")
    a(f"s_lshl_b32 {S_T2}, {S_F}, 1")
    a(f"s_add_u32 {S_T1}, {S_T1}, {S_T2}")
    a(f"s_lshr_b32 {S_T2}, {S_W}, 1")
    a(f"s_add_u32 {S_T1}, {S_T1}, {S_T2}")
    a(f"s_lshl_b32 {S_T1}, {S_T1}, 10")
    a(f"s_add_u32 {S_B2}, {S_T1}, {U_BASE}")


NW2A = opt("w2a", 2)
w2q = [x for k in range(12) for x in w2_dma(k)]
rest = weave(w1_dma(31) + w2q[:4 * NW2A], capture(p3_addr3), 8)
emit(rest)
w2q = w2q[4 * NW2A:]


def hn_loads(bt, st=S_T1):
    base = S_B1 if bt < 8 else S_B0
    L = []
    for i in range(4):
        k = 4 * (bt & 7) + i
        g = []
        if i == 0:
            g.append(f"s_add_u32 {st}, {base}, {k*1024}")
        g.append((f"buffer_load_dwordx4 {vr(HS+16*(bt%5)+4*i,4)}, {V_L16}, {sWS}, {st} offen offset:{i*1024} sc1", ("hn", bt)))
        L.append(g)
    return L


a.wait(vm="hnpub")
stamp("hnack")
PRE3 = 4
for bt in range(PRE3):
    emit(hn_loads(bt))
a.wait(vm=("w1", 31))
emit(w1_read(31))
a.wait(lg="all")
a("s_barrier")


def acc3(sa, sb):
    return ("v", ACCO) if (sa, sb) == (0, 0) else ("a", 16 * (2 * sa + sb - 1))


def r3_write(sa, sb, i):
    dl = sa + 2 * sb
    return (f"ds_write_b128 v{RW+dl-1}, {rr(acc3(sa,sb),4,4*i)} offset:{i*1024}", "r3w")


def r3_read(dl, i, dst):
    return (f"ds_read_b128 {vr(dst+4*i,4)}, {V_RIN} offset:{(dl-1)*5120+i*1024}", ("r3r", dl))


RA, RB = 156, 168
NW2B = opt("w2b", 4)
w2done = NW2A


def hn_check(bt):
    return [lambda: a.wait(vm=("hn", bt))] + check_parts([HS + 16 * (bt % 5) + 4 * i for i in range(4)], 28, hn_loads(bt, S_RT), f"hn{bt}")


emit(hn_check(0))
stamp("hn0")
for bt in range(16):
    sa = 1 if bt < 8 else 0
    ck = hn_check(bt + 1) if bt < 15 else None
    extra = []
    if bt == 9:
        extra = [[]] * 2 + [[r3_write(1, 0, i)] for i in range(4)]
    if bt == 10:
        extra = [[r3_write(1, 1, i)] for i in range(4)]
    if bt == 11:
        for i in range(4):
            extra.append([f"v_lshlrev_b32 v{RA+4*i}, 16, v{B1+2*i}", f"v_and_b32 v{RA+4*i+1}, {S_MASK}, v{B1+2*i}"])
            extra.append([f"v_lshlrev_b32 v{RA+4*i+2}, 16, v{B1+2*i+1}", f"v_and_b32 v{RA+4*i+3}, {S_MASK}, v{B1+2*i+1}"])
    if bt == 12:
        a.wait(lg="all")
        a("s_barrier")
    if bt == 13:
        extra = [[r3_read(1, i, HS + 16)] for i in range(4)] + [[r3_read(3, i, HS + 32)] for i in range(4)]
    if bt == 14:
        extra = [[lambda: a.wait(lg="all")]] + [[] for _ in range(7)]
        for i in range(8):
            extra[i] = extra[i] + [f"v_pk_add_f32 {vr(RA+2*i,2)}, {vr(RA+2*i,2)}, {vr(HS+16+2*i,2)}",
                                   f"v_pk_add_f32 {vr(RA+2*i,2)}, {vr(RA+2*i,2)}, {vr(HS+32+2*i,2)}"]
    if bt == 15:
        rd = [x for k in range(NW2A) for x in w2_read(k)]
        per = -(-len(rd) // 8)
        extra = [rd[per * i:per * i + per] for i in range(8)]
    nxt = hn_loads(bt + PRE3) if bt + PRE3 < 16 else []
    n = 0
    for i in range(4):
        k = 4 * (bt & 7) + i
        for b in (1, 0):
            d = rr(acc3(sa, b), 16)
            c = "0" if k == 0 else d
            a(f"v_mfma_f32_32x32x16_bf16 {d}, {rr(w1reg(k),4,4*b)}, {vr(HS+16*(bt%5)+4*i,4)}, {c}")
            if b == 1:
                if nxt:
                    emit(nxt.pop(0))
                elif bt - 12 < NW2B:
                    emit(w2q.pop(0))
            if n < len(extra):
                emit(extra[n])
            if ck and n == 6:
                emit(ck[:-1])
            if ck and n == 7:
                emit(ck[-1:])
            n += 1
w2done += min(NW2B, 4)
GC = math.sqrt(2.0 / math.pi) * 2.0 * math.log2(math.e)
a(f"s_mov_b32 {S_C0}, {f2u(-GC*0.044715):#x}")
a(f"s_mov_b32 {S_C1}, {f2u(-GC*0.044715):#x}")
a(f"v_mov_b32 v28, {f2u(-GC):#x}")
a(f"v_mov_b32 v29, {f2u(-GC):#x}")
for i in range(4):
    emit([r3_write(0, 1, i)])
for i in range(8):
    a(f"v_pk_add_f32 {vr(RA+2*i,2)}, {vr(RA+2*i,2)}, {vr(ACCO+2*i,2)}")
a.wait(lg="all")
a("s_barrier")
for i in range(4):
    x = r3_read(2, i, HS + 16)
    a(x[0], tag=("r3z", i))
stamp("p3mm")
UP = 132
for m in range(2):
    for i in (2 * m, 2 * m + 1):
        a.wait(lg=("r3z", i))
        for p in range(2):
            x = RA + 4 * i + 2 * p
            t = 172 + 2 * p
            a(f"v_pk_add_f32 {vr(x,2)}, {vr(x,2)}, {vr(HS+16+4*i+2*p,2)}")
            a(f"v_pk_mul_f32 {vr(t,2)}, {vr(x,2)}, {vr(x,2)}")
            a(f"v_pk_fma_f32 {vr(t,2)}, {vr(t,2)}, s[90:91], v[28:29]")
            a(f"v_pk_mul_f32 {vr(t,2)}, {vr(t,2)}, {vr(x,2)}")
        for r in range(4):
            a(f"v_exp_f32 v{172+r}, v{172+r}")
        for p in range(2):
            a(f"v_pk_add_f32 {vr(172+2*p,2)}, {vr(172+2*p,2)}, 1.0 op_sel_hi:[1,0]")
        for r in range(4):
            a(f"v_rcp_f32 v{172+r}, v{172+r}")
        for p in range(2):
            a(f"v_pk_mul_f32 {vr(172+2*p,2)}, {vr(172+2*p,2)}, {vr(RA+4*i+2*p,2)}")
        for p in range(2):
            a(f"v_cvt_pk_bf16_f32 v{UP+4*m+2*(i&1)+p}, v{172+2*p}, v{173+2*p}")
    a(f"v_min_u32 v{UP+4*m}, -2, v{UP+4*m}")
    a(f"buffer_store_dwordx4 {vr(UP+4*m,4)}, v17, {sWS}, {S_B2} offen offset:{512*m} sc1", tag="upub")
stamp("upub")
a.label("L_p3join")
assert w2done == NW2


def p3idle():
    a.label("L_p3idle")
    p3_addr2()
    a("s_waitcnt lgkmcnt(0)")
    a.vm = []
    a.lg = []
    for k in range(NW2):
        emit(w2_dma(k))
    a.wait(vm="all")
    for k in range(NW2A):
        emit(w2_read(k))
    a.wait(lg="all")
    a(f"s_mul_i32 {S_T1}, {S_J}, {5*48}")
    a(f"s_mul_i32 {S_T2}, {S_W}, 12")
    a(f"s_add_u32 {S_T1}, {S_T1}, {S_T2}")
    a(f"s_lshl_b32 {S_T1}, {S_T1}, 10")
    a(f"s_add_u32 {S_T1}, {S_T1}, {U_BASE}")
    a("v_mov_b32 v60, 0")
    a.label("L_p3poll")
    a(f"buffer_load_dword v61, v60, {sWS}, {S_T1} offen sc1")
    a("s_waitcnt vmcnt(0)")
    a.vm = []
    a("v_cmp_eq_u32 vcc, -1, v61")
    a("s_cbranch_vccz L_p3join")
    a(f"s_sub_u32 {S_RETRY}, {S_RETRY}, 1")
    a("s_cbranch_scc1 L_exit")
    a("s_sleep 8")
    a("s_branch L_p3poll")


late.append(p3idle)

V_B2 = "v18"
V_OW, V_OR, OUTA = "v19", "v20", 21
US = 32
R4 = 132


def p4_addr():
    a(f"s_lshl_b32 {S_T1}, {S_TB}, 2")
    a(f"s_add_u32 {S_T1}, {S_T1}, {S_W}")
    a(f"s_lshl_b32 {S_T2}, {S_T1}, 5")
    a(f"v_lshlrev_b32 v104, 1, {V_T16}")
    a(f"v_add_u32 v104, {S_T2}, v104")
    a(f"global_load_ushort {V_B2}, v104, s[22:23]", tag="b2")
    a(f"s_mul_i32 {S_T1}, {S_J}, {5*48}")
    a(f"s_mul_i32 {S_T2}, {S_W}, 12")
    a(f"s_add_u32 {S_T1}, {S_T1}, {S_T2}")
    a(f"s_lshl_b32 {S_T1}, {S_T1}, 10")
    a(f"s_add_u32 {S_B0}, {S_T1}, {U_BASE}")
    a(f"v_mul_u32_u24 v104, 160, {V_T16}")
    a(f"v_lshl_add_u32 v104, {V_G}, 3, v104")
    a(f"v_add_u32 {V_OW}, {S_LW}, v104")
    a(f"v_add_u32 {V_OR}, {S_LW}, {V_L16}")
    for i in range(3):
        a(f"v_add_u32 v104, {64*i}, v0")
        a("v_mul_u32_u24 v105, 6554, v104")
        a("v_lshrrev_b32 v105, 16, v105")
        a("v_mul_u32_u24 v105, 1120, v105")
        a(f"v_lshl_add_u32 v{OUTA+i}, v104, 4, v105")


a.wait(vm=("w2", NW2 - 1))
fill = [x for k in range(NW2A, NW2) for x in w2_read(k)]
fill = weave(w2q[:4 * NW2A], fill, 32 // (4 * NW2A) if NW2A else 0)
emit(fill)
w2q = w2q[4 * NW2A:]
a.wait(lg="all")
NW2C = opt("w2c", 2)
rest = weave(w2q[:4 * NW2C], capture(p4_addr), 5)
emit(rest)
w2q = w2q[4 * NW2C:]


def u_loads(bt, st=S_T1):
    ct, qt = bt >> 2, bt & 3
    L = []
    for i in range(3):
        k = 3 * qt + i
        g = []
        if i == 0:
            g.append(f"s_add_u32 {st}, {S_B0}, {(ct*48+k)*1024}")
        g.append((f"buffer_load_dwordx4 {vr(US+12*(bt%6)+4*i,4)}, {V_L16}, {sWS}, {st} offen offset:{i*1024} sc1", ("u", bt)))
        L.append(g)
    return L


a.wait(vm="upub")
stamp("uack")
PRE4 = 5
emit(u_loads(0) + u_loads(1))
emit(w2q)
nrd = NW2 + NW2A + NW2C
a.wait(vm=("w2", nrd - 1))
for k in range(NW2, nrd):
    emit(w2_read(k))
for bt in range(2, PRE4):
    emit(u_loads(bt))
a("s_barrier")


def acc4(ct, b):
    return ("v", H + 4 * ct) if b == 0 else ("a", 12 * ct + 4 * (b - 1))


def r4_write(ct, b):
    return (f"ds_write_b128 v{RW+b-1}, {rr(acc4(ct,b),4)} offset:{ct*1024}", "r4w")


def r4_read(ct, b):
    return (f"ds_read_b128 {vr(R4+12*ct+4*(b-1),4)}, {V_RIN} offset:{(b-1)*5120+ct*1024}", ("r4r", ct))


def u_check(bt):
    return [lambda: a.wait(vm=("u", bt))] + check_parts([US + 12 * (bt % 6) + 4 * i for i in range(3)], 28, u_loads(bt, S_RT), f"u{bt}")


emit(u_check(0))
stamp("u0")
for bt in range(20):
    ct, qt = bt >> 2, bt & 3
    ck = u_check(bt + 1) if bt < 19 else None
    extra = []
    if bt == 2:
        for k in range(nrd, 12):
            emit(w2_read(k))
    if qt == 0 and ct > 0:
        extra = [[]] * 5 + [[r4_write(ct - 1, b)] for b in range(1, 4)]
    if bt == 18:
        a.wait(lg="all")
        a("s_barrier")
        extra = [[r4_read(c, b)] for c in range(4) for b in range(1, 4)]
    nxt = u_loads(bt + PRE4) if bt + PRE4 < 20 else []
    n = 0
    for i in range(3):
        k = 3 * qt + i
        if ct == 0:
            a.wait(lg=("w2f", k))
        for b in (1, 2, 3, 0):
            d = rr(acc4(ct, b), 4)
            c = d if (k or b == 0) else "0"
            a(f"v_mfma_f32_16x16x32_bf16 {d}, {vr(US+12*(bt%6)+4*i,4)}, {rr(w2reg(k),4,4*b)}, {c}")
            if b == 1 and nxt:
                emit(nxt.pop(0))
            if n < len(extra):
                emit(extra[n])
            if ck and n == 9:
                emit(ck[:-1])
            if ck and n == 11:
                emit(ck[-1:])
            n += 1


def fin(ct):
    r = R4 + 12 * ct
    o = H + 4 * ct
    for p in range(2):
        a(f"v_pk_add_f32 {vr(r+2*p,2)}, {vr(r+2*p,2)}, {vr(r+4+2*p,2)}")
        a(f"v_pk_add_f32 {vr(o+2*p,2)}, {vr(o+2*p,2)}, {vr(r+8+2*p,2)}")
        a(f"v_pk_add_f32 {vr(r+2*p,2)}, {vr(r+2*p,2)}, v[28:29]")
    for p in range(2):
        a(f"v_pk_add_f32 {vr(o+2*p,2)}, {vr(o+2*p,2)}, {vr(r+2*p,2)}")
    a(f"v_cvt_pk_bf16_f32 v{o}, v{o}, v{o+1}")
    a(f"v_cvt_pk_bf16_f32 v{o+1}, v{o+2}, v{o+3}")
    a(f"ds_write_b64 {V_OW}, {vr(o,2)} offset:{32*ct}", tag="ow")


a(f"v_lshlrev_b32 v28, 16, {V_B2}")
a(f"v_lshlrev_b32 v29, 16, {V_B2}")
a.wait(lg=("r4r", 0))
fin(0)
for b in range(1, 4):
    emit([r4_write(4, b)])
a.wait(lg=("r4r", 3))
fin(1)
a.wait(lg="r4w")
a("s_barrier")
for b in range(1, 4):
    emit([r4_read(4, b)])
fin(2)
fin(3)
a.wait(lg=("r4r", 4))
fin(4)
for i in range(3):
    a(f"ds_read_b128 {vr(32+4*i,4)}, {V_OR} offset:{1024*i}", tag=("or", i))
for i in range(3):
    a.wait(lg=("or", i))
    if i == 2:
        a("s_mov_b32 exec_hi, 0")
    a(f"buffer_store_dwordx4 {vr(32+4*i,4)}, v{OUTA+i}, {sOUT}, {S_XO} offen {opt('outfl', '')}")
if STAMP:
    a("s_mov_b32 exec_hi, -1")
    stamp("outst")
    a.wait(vm="all")
    stamp("end")
    a(f"v_writelane_b32 {V_ST}, {S_RETRY}, 31")
    a(f"s_lshl_b32 {S_T0}, s2, 2")
    a(f"s_add_u32 {S_T0}, {S_T0}, {S_W}")
    a(f"s_lshl_b32 {S_T0}, {S_T0}, 8")
    a(f"s_add_u32 {S_T0}, {S_T0}, {STAMP_BASE}")
    a("v_lshlrev_b32 v60, 2, v0")
    a(f"buffer_store_dword {V_ST}, v60, {sWS}, {S_T0} offen")
a.label("L_exit")
a("s_endpgm")
for f in late:
    f()
a.label("L_end")

body = a.finish(verbose="--vpad" in ARGS)
hdr = open(f"cdna_kernels/{NAME}.s.ref").read().split("; Override launch")[0]
src = hdr + f"""; One persistent launch: 256 workgroups (one per CU) x 4 waves; phases hand data over through d_ws.
; @launch grid=(256,1,1) block=(256,1,1) lds=163840
.amdgcn_target "amdgcn-amd-amdhsa--gfx950"
.text
.globl {NAME}_kernel
.p2align 8
.type {NAME}_kernel,@function
.set CODE_TOUCH_MAX, L_exit - {NAME}_kernel
{NAME}_kernel:
{body}
.section .rodata,"a"
.p2align 6
.amdhsa_kernel {NAME}_kernel
  .amdhsa_next_free_vgpr 512
  .amdhsa_next_free_sgpr 102
  .amdhsa_accum_offset 256
  .amdhsa_group_segment_fixed_size 0
  .amdhsa_kernarg_size 104
  .amdhsa_user_sgpr_count 2
  .amdhsa_user_sgpr_kernarg_segment_ptr 1
  .amdhsa_system_sgpr_workgroup_id_x 1
  .amdhsa_float_denorm_mode_32 3
.end_amdhsa_kernel
"""
open(OUT, "w").write(src)
if STAMP:
    open(OUT + ".stamps", "w").write(" ".join(stamp_names))
print("wrote", OUT, "instructions", sum(1 for i in a.ins if i.mn), "nops added", a.nops_added)
```

```python
import sys, os, math, struct
sys.path.insert(0, os.path.dirname(os.path.abspath(__file__)))
from asmlib import Asm, Ins

NAME = "sequential_preLN__grouped_kv_mqa__mixer_token_mlp__prompt"
ARGS = sys.argv[1:]


def opt(name, default):
    for x in ARGS:
        if x.startswith(f"--{name}="):
            return type(default)(x.split("=", 1)[1])
    return default


STAMP = "--stamp" in ARGS
FORCE_FB = "--forcefb" in ARGS
XMAP = "--xmap" in ARGS
TOUCH = opt("touch", 2)
FASTHOP = opt("fasthop", 1)
OUT = [x for x in ARGS if not x.startswith("--")]
OUT = OUT[0] if OUT else f"cdna_kernels/{NAME}.s"


def f2u(x):
    return struct.unpack("<I", struct.pack("<f", x))[0]


KV_BLK = 6144
BIG = 0x100000
O_BASE = BIG
O_BLK = 81920
ST_BASE = O_BASE + 32 * O_BLK
HN_BASE = ST_BASE + 131072
U_BASE = HN_BASE + 2621440
BIG_END = U_BASE + 1966080
assert BIG_END - BIG == 256 * 28672
STAMP_BASE = 0xA00000
WS_BYTES = 0x1000000
OOB = 0x7F000000

L_WKV = 81920
L_WQ = 107520
L_Q = 98304
L_WO = 0
L_RED = 102400
L_W1S = 126976
L_FLAG = 159744

sX, sWQ, sWKV, sWO, sW1, sW2, sOUT, sWS = (f"s[{b}:{b+3}]" for b in (32, 36, 40, 44, 48, 52, 56, 60))
S_W, S_XCD, S_IDX, S_TB, S_J, S_D, S_F = "s64", "s65", "s66", "s67", "s68", "s69", "s70"
S_T0, S_T1, S_T2, S_T3 = "s71", "s72", "s73", "s74"
S_RETRY = "s75"
S_MASK = "s76"
S_KVB = "s77"
S_B0, S_B1, S_B2 = "s78", "s79", "s30"
S_FL = 80
S_CNT = "s88"
S_LDSW = "s89"
S_C0, S_C1 = "s90", "s91"
S_FBI = "s31"
S_KV0 = "s92"
S_W1G, S_W1L = "s93", "s94"
S_PF = "s95"
S_WG = "s3"
S_OPM, S_OPL, S_OLM, S_OLL, S_STB, S_STW, S_HNB = "s80", "s81", "s82", "s83", "s84", "s85", "s86"
S_W2G, S_LW, S_REDW = "s4", "s5", "s6"
S_RT, S_FAST, S_GRP, S_XO = "s7", "s8", "s9", "s10"

V_L16, V_T16, V_G, V_L8, V_IDX, V_VA, V_ST = "v1", "v2", "v3", "v4", "v5", "v6", "v7"
XR = 8
V_OM, V_XRA, V_W1D = "v18", "v19", "v20"
W1R = 21
V_RW = 23
V_RR = "v26"
WOA = 254

real = Asm()
late = []


class Cap:
    def __init__(self):
        self.l = []

    def __call__(self, text, tag=None):
        self.l.append((text, tag) if tag is not None else text)


class Front:
    def __init__(self):
        self.tgt = real

    def __call__(self, text, tag=None):
        self.tgt(text, tag=tag)

    def __getattr__(self, n):
        assert self.tgt is real, n
        return getattr(real, n)

    def __setattr__(self, n, v):
        if n == "tgt":
            object.__setattr__(self, n, v)
        else:
            setattr(real, n, v)


a = Front()


def capture(fn):
    c = Cap()
    a.tgt = c
    fn()
    a.tgt = real
    return c.l


def vr(b, n=1):
    return f"v{b}" if n == 1 else f"v[{b}:{b+n-1}]"


def ar(b, n=1):
    return f"a{b}" if n == 1 else f"a[{b}:{b+n-1}]"


def rr(spec, n, off=0):
    k, b = spec
    b += off
    return f"{k}{b}" if n == 1 else f"{k}[{b}:{b+n-1}]"


nstamp = [0]
stamp_names = []


def stamp(name):
    if not STAMP:
        return
    i = nstamp[0]
    nstamp[0] += 1
    stamp_names.append(name)
    a("s_memrealtime s[96:97]")
    a("s_memtime s[98:99]")
    a.wait(lg="all")
    a(f"v_writelane_b32 {V_ST}, s96, {i}")
    a(f"v_writelane_b32 {V_ST}, s98, {32+i}")


def srd(dst, ptr, nbytes):
    b = int(dst[2:dst.index(":")])
    a(f"s_mov_b64 s[{b}:{b+1}], s[{ptr}:{ptr+1}]")
    a(f"s_mov_b32 s{b+2}, {nbytes}")
    a(f"s_mov_b32 s{b+3}, 0x20000")


def dma(vaddr, s, soff_base, soff_add, lds_base, lds_add, tag, flags=""):
    ins = []
    ins.append(f"s_add_u32 m0, {lds_base}, {lds_add}" if lds_base else f"s_mov_b32 m0, {lds_add}")
    ins.append(f"s_add_u32 {S_T0}, {soff_base}, {soff_add}" if soff_base else f"s_mov_b32 {S_T0}, {soff_add}")
    ins.append((f"buffer_load_dwordx4 {vaddr}, {s}, {S_T0} offen {flags} lds", tag))
    return ins


def emit(lst):
    for x in lst:
        if isinstance(x, tuple):
            a(x[0], tag=x[1])
        elif callable(x):
            x()
        elif isinstance(x, list):
            emit(x)
        else:
            a(x)


def weave(groups, fill, per):
    fill = list(fill)
    for g in groups:
        emit(g)
        emit(fill[:per])
        fill = fill[per:]
    return fill


def check_parts(regs, tmp, reissue, name):
    lb = a.newlabel("ok" + name)
    lr = a.newlabel("rty" + name)
    items = []
    regs = list(regs)
    if len(regs) == 2:
        items.append(f"v_max_u32 v{tmp}, v{regs[0]}, v{regs[1]}")
        rest = []
    else:
        items.append(f"v_max3_u32 v{tmp}, v{regs[0]}, v{regs[1]}, v{regs[2]}")
        rest = regs[3:]
    while len(rest) >= 2:
        items.append(f"v_max3_u32 v{tmp}, v{tmp}, v{rest[0]}, v{rest[1]}")
        rest = rest[2:]
    if rest:
        items.append(f"v_max_u32 v{tmp}, v{tmp}, v{rest[0]}")
    items.append(f"v_cmp_eq_u32 vcc, -1, v{tmp}")
    test = list(items)
    items.append([f"s_cbranch_vccnz {lr}", lambda: a.label(lb)])

    def ool():
        a.label(lr)
        a(f"s_sub_u32 {S_RETRY}, {S_RETRY}, 1")
        a("s_cbranch_scc1 L_exit")
        a(f"s_sleep {opt('rsleep', 1)}")
        emit(reissue)
        a("s_waitcnt vmcnt(0)")
        a.vm = []
        emit(test)
        a(f"s_cbranch_vccnz {lr}")
        a(f"s_branch {lb}")
    late.append(ool)
    return items


def xreduce(regs, tmp):
    for sw in ("v_permlane16_swap_b32", "v_permlane32_swap_b32"):
        for i, r in enumerate(regs):
            a(f"v_mov_b32 v{tmp+i}, v{r}")
        for i, r in enumerate(regs):
            a(f"{sw} v{r}, v{tmp+i}")
        for i, r in enumerate(regs):
            a(f"v_add_f32 v{r}, v{r}, v{tmp+i}")


a("s_cmp_ge_u32 s2, 256")
a("s_cbranch_scc1 L_exit")
a("s_load_dwordx16 s[4:19], s[0:1], 0")
a("s_load_dwordx8 s[20:27], s[0:1], 64")
a("s_load_dwordx2 s[28:29], s[0:1], 96")
a("s_getpc_b64 s[100:101]")
a("v_lshrrev_b32 v1, 6, v0")
a("v_and_b32 v0, 63, v0")
a(f"v_readfirstlane_b32 {S_W}, v1")
a(f"v_lshlrev_b32 {V_L16}, 4, v0")
a(f"v_and_b32 {V_T16}, 15, v0")
a(f"v_lshrrev_b32 {V_G}, 4, v0")
if XMAP:
    a(f"s_lshr_b32 {S_XCD}, s2, 5")
    a(f"s_and_b32 {S_IDX}, s2, 31")
else:
    a(f"s_and_b32 {S_XCD}, s2, 7")
    a(f"s_lshr_b32 {S_IDX}, s2, 3")
a(f"s_lshr_b32 {S_T0}, {S_IDX}, 3")
a(f"s_lshl_b32 {S_TB}, {S_XCD}, 2")
a(f"s_add_u32 {S_TB}, {S_TB}, {S_T0}")
a(f"s_and_b32 {S_J}, {S_IDX}, 7")
a(f"s_mov_b32 {S_MASK}, 0xffff0000")
a(f"s_mov_b32 {S_FBI}, 0")
a(f"s_mov_b32 {S_RETRY}, 400000")
XA = 76
a("v_lshrrev_b32 v60, 3, v0")
a("v_and_b32 v61, 7, v0")
a(f"v_xor_b32 v62, v61, {V_G}")
a("v_mul_u32_u24 v63, 1280, v60")
a(f"v_lshl_add_u32 v{XA}, v62, 4, v63")
a("v_xor_b32 v62, 4, v62")
a(f"v_lshl_add_u32 v{XA+1}, v62, 4, v63")
a(f"v_add_u32 v{XA+1}, {8*1280}, v{XA+1}")
a(f"s_lshl_b32 {S_B0}, {S_TB}, 2")
a(f"s_add_u32 {S_B0}, {S_B0}, {S_W}")
a(f"s_mul_i32 {S_B0}, {S_B0}, {16*1280}")
a(f"s_mul_i32 {S_LDSW}, {S_W}, 20480")
a("v_lshlrev_b32 v64, 7, v0")
a(f"s_lshl_b32 {S_T1}, {S_IDX}, 2")
a(f"s_add_u32 {S_WG}, {S_T1}, {S_W}")
a.wait(lg="all")
if STAMP:
    a(f"v_mov_b32 {V_ST}, 0")
stamp("start")
srd(sX, 4, 2048 * 1280)


def touch_x():
    a(f"s_and_b32 {S_T1}, {S_WG}, 31")
    a(f"s_mul_i32 {S_T1}, {S_T1}, 2560")
    a(f"s_mul_i32 {S_T2}, {S_TB}, 81920")
    a(f"s_add_u32 {S_T1}, {S_T1}, {S_T2}")
    a("s_mov_b64 exec, 0xfffff")
    a(f"buffer_load_dword v65, v64, {sX}, {S_T1} offen", tag="touch")
    a("s_mov_b64 exec, -1")


def touch_w():
    a(f"s_lshl_b32 {S_T1}, {S_WG}, 9")
    a(f"s_min_u32 {S_T1}, {S_T1}, CODE_TOUCH_MAX")
    a(f"v_add_u32 v66, {S_T1}, v64")
    a("s_mov_b64 exec, 15")
    a("global_load_dword v65, v66, s[100:101]", tag="touch")
    a(f"s_bitcmp1_b32 {S_WG}, 0")
    a("s_cselect_b32 s40, s8, s10")
    a("s_cselect_b32 s41, s9, s11")
    a("s_mov_b32 s42, 25600")
    a("s_mov_b32 s43, 0x20000")
    a(f"s_lshr_b32 {S_T1}, {S_WG}, 1")
    a(f"s_lshl_b32 {S_T1}, {S_T1}, 9")
    a(f"buffer_load_dword v65, v64, {sWKV}, {S_T1} offen", tag="touch")
    a("s_mov_b32 exec_lo, -1")
    a("s_mov_b32 exec_hi, 0x3ffff")
    a(f"s_mul_i32 {S_T1}, {S_WG}, 6400")
    a(f"buffer_load_dword v65, v64, {sWQ}, {S_T1} offen", tag="touch")
    a("s_mov_b64 exec, -1")


srd(sWS, 28, WS_BYTES)

snap = a.snapshot()
a(f"s_cmp_lg_u32 {S_IDX}, 4")
a("s_cbranch_scc1 L_noprefill")
a(f"s_lshl_b32 {S_T1}, {S_XCD}, 2")
a(f"s_add_u32 {S_T1}, {S_T1}, {S_W}")
a(f"s_mul_i32 {S_T1}, {S_T1}, {KV_BLK}")
a("v_mov_b64 v[108:109], -1")
a("v_mov_b64 v[110:111], -1")
for i in range(3):
    a(f"buffer_store_dwordx4 v[108:111], {V_L16}, {sWS}, {S_T1} offen offset:{i*1024} sc1")
a(f"s_add_u32 {S_T1}, {S_T1}, 3072")
a("v_mov_b32 v62, 0x3f803f80")
for i in range(3):
    d = 96 + 4 * i
    a(f"v_add_u32 v60, {64*i}, v0")
    a("v_mul_u32_u24 v61, 2731, v60")
    a("v_lshrrev_b32 v61, 16, v61")
    a("v_mul_u32_u24 v61, 24, v61")
    a("v_sub_u32 v60, v60, v61")
    a("v_and_b32 v60, 0x1b, v60")
    a("v_cmp_eq_u32 vcc, 18, v60")
    a(f"v_cndmask_b32 v{d}, -1, v62, vcc")
    a("v_cmp_ne_u32 vcc, 19, v60")
    a(f"v_cndmask_b32 v{d}, 0, v{d}, vcc")
    for r in range(1, 4):
        a(f"v_mov_b32 v{d+r}, v{d}")
    a(f"buffer_store_dwordx4 v[{d}:{d+3}], {V_L16}, {sWS}, {S_T1} offen offset:{i*1024} sc1")
a.label("L_noprefill")
a.restore(snap)

xd = [dma(f"v{XA+b}", sX, S_B0, s2 * 128, S_LDSW, (2 * s2 + b) * 1024, ("x", s2)) for s2 in range(10) for b in range(2)]
NX0 = opt("nx0", 2 if TOUCH == 1 else 6)
if TOUCH:
    touch_x()
if TOUCH != 1:
    emit(xd[:NX0])
srd(sWQ, 6, 640 * 1280)
if TOUCH:
    touch_w()
if TOUCH == 1:
    emit(xd[:NX0])
V_WQA = "v78"
XRD = 83
WQR = 85
V_KVR = "v92"
V_KVS = "v93"
QW = 124
QR = 129
S1 = 68


def addr_first():
    a("v_bfe_u32 v60, v0, 2, 2")
    a("v_and_b32 v61, 3, v0")
    a(f"v_and_b32 v62, 1, {V_G}")
    a(f"v_lshl_add_u32 v63, {V_G}, 3, v60")
    a("v_lshlrev_b32 v72, 1, v62")
    a("v_xor_b32 v72, v72, v61")
    a("v_mul_u32_u24 v73, 1280, v63")
    a(f"v_lshl_add_u32 {V_WQA}, v72, 4, v73")
    a(f"s_mul_i32 {S_T2}, {S_J}, 160")
    a(f"s_add_u32 {S_XO}, {S_B0}, {S_T2}")
    a(f"s_and_b32 {S_B1}, {S_T2}, 0xffc0")
    a(f"s_mul_i32 {S_T2}, {S_W}, {32*1280}")
    a(f"s_add_u32 {S_B1}, {S_B1}, {S_T2}")
    a(f"s_mul_i32 {S_B2}, {S_W}, 6144")
    a("v_mul_u32_u24 v63, 40, v63")
    a("v_lshl_add_u32 v63, v61, 3, v63")
    a(f"s_and_b32 {S_T3}, {S_J}, 1")
    a(f"s_lshl_b32 {S_T2}, {S_T3}, 5")
    a(f"s_add_u32 {S_T2}, {S_T2}, {L_WKV}")
    a(f"v_add_u32 {V_KVR}, {S_T2}, v63")
    a("v_lshrrev_b32 v63, 2, v0")
    a("v_lshlrev_b32 v63, 6, v63")
    a("v_lshl_add_u32 v63, v61, 3, v63")
    a(f"v_xor_b32 v72, {S_T3}, v62")
    a(f"v_lshl_add_u32 v{WQR+2}, v72, 5, v63")
    a(f"s_lshl_b32 {S_T3}, {S_T3}, 11")
    a(f"v_xor_b32 v72, 32, v{WQR+2}")
    a(f"v_add_u32 v{WQR+3}, {S_T3}, v72")
    for e in range(2):
        a(f"v_add_u32 v{WQR+e}, {L_WQ}, v{WQR+2+e}")
        a(f"v_add_u32 v{WQR+4+e}, {3*20480}, v{WQR+2+e}")
    a(f"v_lshrrev_b32 v63, 1, {V_T16}")
    a(f"v_lshlrev_b32 v72, 7, {V_T16}")
    a(f"v_add_u32 v72, {S_LDSW}, v72")
    a(f"v_xor_b32 v63, {V_G}, v63")
    a(f"v_lshl_add_u32 v{XRD}, v63, 4, v72")
    a(f"v_xor_b32 v{XRD+1}, 64, v{XRD}")
    a(f"v_mov_b64 v[{S1}:{S1+1}], 0")
    a(f"v_mov_b64 v[{S1+2}:{S1+3}], 0")
    a("v_mov_b64 v[94:95], 0")
    a(f"s_mov_b32 {S_C0}, 0x3f803f80")
    for i in range(3):
        a(f"v_mfma_f32_32x32x4_2b_bf16 {ar(32*i,32)}, v[94:95], v[94:95], 0")


def addr_second():
    a(f"v_lshlrev_b32 {V_L8}, 3, v0")
    a("v_bfe_u32 v60, v0, 2, 2")
    a("v_and_b32 v61, 3, v0")
    a(f"v_and_b32 v62, 1, {V_G}")
    a(f"s_lshl_b32 {S_W1L}, {S_W}, 13")
    a(f"s_add_u32 {S_W1L}, {S_W1L}, {L_W1S}")
    a("v_lshrrev_b32 v74, 5, v0")
    a("v_lshlrev_b32 v63, 10, v74")
    a("v_lshl_add_u32 v63, v60, 7, v63")
    a("v_lshl_add_u32 v63, v61, 3, v63")
    a("v_lshl_add_u32 v63, v62, 5, v63")
    a("v_lshrrev_b32 v73, 1, v60")
    a(f"s_lshr_b32 {S_T3}, {S_W}, 1")
    a(f"v_xor_b32 v73, {S_T3}, v73")
    a("v_lshl_add_u32 v63, v73, 6, v63")
    a(f"v_add_u32 v{W1R}, {S_W1L}, v63")
    a(f"v_xor_b32 v{W1R+1}, 64, v{W1R}")
    a("v_lshrrev_b32 v60, 3, v0")
    a("v_and_b32 v61, 7, v0")
    a("v_lshlrev_b32 v62, 2, v62")
    a("v_xor_b32 v61, v61, v62")
    a("v_mul_u32_u24 v63, 3072, v60")
    a(f"v_lshl_add_u32 {V_W1D}, v61, 4, v63")
    a("v_and_b32 v60, 3, v60")
    a("v_bfe_u32 v61, v0, 1, 2")
    a("v_and_b32 v62, 1, v0")
    a("v_lshlrev_b32 v62, 4, v62")
    a("v_lshl_add_u32 v63, v60, 2, v61")
    a("v_lshrrev_b32 v72, 1, v60")
    a("v_mad_u32_u24 v63, v72, 12, v63")
    a("v_lshl_add_u32 v63, v74, 3, v63")
    a("v_mul_u32_u24 v63, 1280, v63")
    a(f"v_add_u32 v{WOA}, v63, v62")
    a("v_mad_u32_u24 v63, v60, 40, v61")
    a("v_lshrrev_b32 v72, 1, v61")
    a("v_mad_u32_u24 v63, v72, 18, v63")
    a("v_lshl_add_u32 v63, v74, 1, v63")
    a("v_mul_u32_u24 v63, 1280, v63")
    a(f"v_add_u32 v{WOA+1}, v63, v62")
    a(f"s_and_b32 {S_T2}, {S_W}, 1")
    a(f"s_lshl_b32 {S_T2}, {S_T2}, 4")
    a(f"v_add_u32 v60, {S_T2}, {V_T16}")
    a(f"v_lshlrev_b32 v61, 9, {V_G}")
    a(f"v_lshl_add_u32 {V_OM}, v60, 4, v61")
    a(f"s_lshl_b32 {S_T3}, {S_T3}, 12")
    a(f"s_add_u32 {S_T3}, {S_T3}, {L_Q}")
    a("v_mul_u32_u24 v60, 88, v60")
    a(f"v_lshl_add_u32 v60, {V_G}, 3, v60")
    a(f"v_add_u32 v{QW}, {S_T3}, v60")
    a(f"v_mul_u32_u24 v60, {8192-80}, v74")
    a(f"v_add_u32 v{QW+1}, v{QW}, v60")
    a(f"s_lshl_b32 {S_T2}, {S_W}, 12")
    a(f"s_add_u32 {S_T2}, {S_T2}, {L_Q}")
    a("v_and_b32 v60, 31, v0")
    a("v_mul_u32_u24 v61, 88, v60")
    a(f"v_add_u32 v61, {S_T2}, v61")
    a(f"v_lshl_add_u32 v{QR}, v74, 4, v61")
    a(f"v_mad_u32_u24 v{QR+4}, v74, 40, v61")
    for sl in range(1, 4):
        a(f"v_xor_b32 v{QR+sl}, {sl<<12}, v{QR}")
        a(f"v_xor_b32 v{QR+4+sl}, {sl<<12}, v{QR+4}")
    a(f"v_mov_b32 {V_IDX}, 0xdddddddd")
    a("v_min_u32 v60, 23, v60")
    a("v_mul_u32_u24 v61, 384, v74")
    a("v_lshl_add_u32 v60, v60, 4, v61")
    a(f"v_add_u32 {V_VA}, 3072, v60")
    a(f"v_mul_u32_u24 v60, 1280, {V_T16}")
    a(f"v_lshl_add_u32 {V_XRA}, {V_G}, 3, v60")
    for sl in range(4):
        a(f"s_xor_b32 {S_T2}, {S_W}, {sl}")
        a(f"s_mul_i32 {S_T2}, {S_T2}, 6144")
        a(f"s_add_u32 {S_T2}, {S_T2}, {L_RED}")
        a(f"v_add_u32 {V_RR if sl == 0 else vr(V_RW+sl-1)}, {S_T2}, {V_L16}")
    a(f"s_lshl_b32 {S_KV0}, {S_XCD}, 2")
    a(f"s_add_u32 {S_KV0}, {S_KV0}, {S_W}")
    srd(sWO, 12, 640 * 1280)
    srd(sW1, 16, 2048 * 3072)
    a(f"s_min_u32 {S_D}, {S_IDX}, 29")
    a(f"s_mul_i32 {S_T2}, {S_D}, 52")
    a(f"s_lshr_b32 {S_T2}, {S_T2}, 8")
    a(f"s_mul_i32 {S_T3}, {S_T2}, 5")
    a(f"s_sub_u32 {S_D}, {S_D}, {S_T3}")
    a(f"s_and_b32 {S_T3}, {S_XCD}, 1")
    a(f"s_mul_i32 {S_T3}, {S_T3}, 5")
    a(f"s_add_u32 {S_D}, {S_D}, {S_T3}")
    a(f"s_lshr_b32 {S_T3}, {S_XCD}, 1")
    a(f"s_mul_i32 {S_T3}, {S_T3}, 6")
    a(f"s_add_u32 {S_F}, {S_T2}, {S_T3}")
    a(f"s_mul_i32 {S_W1G}, {S_W}, {512*3072}")
    a(f"s_lshl_b32 {S_T2}, {S_F}, 7")
    a(f"s_add_u32 {S_W1G}, {S_W1G}, {S_T2}")


a(f"s_cmp_lt_u32 {S_J}, 2")
a("s_cselect_b32 s40, s8, s10")
a("s_cselect_b32 s41, s9, s11")
a(f"s_cmp_lt_u32 {S_J}, 4")
a("s_cselect_b32 s42, 25600, 0")
a("s_mov_b32 s43, 0x20000")
addr_first()
snap = a.snapshot()
a(f"s_cmp_lg_u32 {S_IDX}, 4")
a("s_cbranch_scc1 L_nosignal")
a(f"s_waitcnt vmcnt({len(a.vm)})")
a("s_barrier")
a(f"s_cmp_lg_u32 {S_W}, 0")
a("s_cbranch_scc1 L_nosignal")
a(f"s_lshl_b32 {S_T2}, {S_XCD}, 2")
a(f"v_mov_b32 v60, {S_T2}")
a("v_mov_b32 v61, 1")
a("s_mov_b64 exec, 1")
a("global_store_dword v60, v61, s[26:27] sc1")
a("s_mov_b64 exec, -1")
a.label("L_nosignal")
a.restore(snap)

second = capture(addr_second)
N2 = opt("n2", 200)
emit(second[:N2])
second = second[N2:]
stamp("addr")
a(f"s_lshl_b32 {S_T1}, {S_W}, 10")
wkvd = [dma(V_L16, sWKV, S_T1, m * 4096, S_T1, L_WKV + m * 4096, "wkv") for m in range(6)]
wkvd.append(dma(V_L16, sWKV, None, 24576, None, L_WKV + 24576, "wkv"))


def wq_dma(st):
    base, off = (S_B2, L_WQ + st * 24576) if st < 2 else (S_LDSW, (st - 2) * 6144)
    return [dma(V_WQA, sWQ, S_B1, (st * 128 + 4 * q) * 1280 + 64 * seg, base, off + seg * 2048 + q * 1024, ("wq", st))
            for q in range(2) for seg in range(3)]


XF = 152


def stats(sig):
    L = []
    for r in range(4):
        R = XF + 4 * sig + r
        L += [f"v_dot2c_f32_bf16 v{S1+(r&1)}, {S_C0}, v{R}", f"v_dot2c_f32_bf16 v{S1+2+(r&1)}, v{R}, v{R}"]
    return L


AHEAD = opt("ahead", 10)
dq = xd[NX0:] + wkvd + wq_dma(0) + wq_dma(1)
emit(dq[:AHEAD - NX0])
dq = dq[AHEAD - NX0:]
for s2 in range(10):
    a.wait(vm=("x", s2))
    if s2 == 0:
        stamp("x0")
    for p in range(2):
        a(f"ds_read_b128 {vr(XF+4*(2*s2+p),4)}, v{XRD+p} offset:{s2*2048}", tag=("xf", s2))
    emit(dq[:1])
    if s2:
        a.wait(lg=("xf", s2 - 1))
        emit(stats(2 * s2 - 2))
    emit(dq[1:2])
    if s2:
        emit(stats(2 * s2 - 1))
    dq = dq[2:]
a.wait(lg="all")
a(f"s_load_dwordx8 s[{S_FL}:{S_FL+7}], s[26:27], 0")
dq += wq_dma(2) + wq_dma(3) + wq_dma(4)
emit(dq[:1])
emit(stats(18))
emit(dq[1:2])
emit(stats(19))
dq = dq[2:]
a(f"v_add_f32 v{S1}, v{S1}, v{S1+1}")
a(f"v_add_f32 v{S1+1}, v{S1+2}, v{S1+3}")
xreduce([S1, S1 + 1], 60)
a(f"v_mul_f32 v60, {f2u(1/640):#x}, v{S1}")
a(f"v_mul_f32 v61, {f2u(1/640):#x}, v{S1+1}")
a("v_fma_f32 v61, -v60, v60, v61")
a("v_max_f32 v61, 0, v61")
a(f"v_add_f32 v61, {f2u(1e-5):#x}, v61")
a(f"v_rsq_f32 v{S1}, v61")
a(f"v_mul_f32 v{S1+1}, -v60, v{S1}")
stamp("stats")
for sig in range(20):
    if sig % 3 != 2 and dq:
        emit(dq.pop(0))
    for R in range(XF + 4 * sig, XF + 4 * sig + 4):
        t = 60 + 2 * (R & 1)
        a(f"v_lshlrev_b32 v{t}, 16, v{R}")
        a(f"v_and_b32 v{t+1}, {S_MASK}, v{R}")
        a(f"v_pk_fma_f32 {vr(t,2)}, {vr(t,2)}, {vr(S1,2)}, {vr(S1,2)} op_sel:[0,0,1] op_sel_hi:[1,0,1]")
        a(f"v_cvt_pk_bf16_f32 v{R}, v{t}, v{t+1}")
a.wait(lg="all")
for i in range(1, 8):
    a(f"s_and_b32 s{S_FL}, s{S_FL}, s{S_FL+i}")
a(f"s_cmp_eq_u32 s{S_FL}, 1")
a("s_cbranch_scc0 L_spin1")
a.label("L_spin1_done")


def spin1():
    a.label("L_spin1")
    a(f"s_sub_u32 {S_RETRY}, {S_RETRY}, 1")
    a("s_cbranch_scc1 L_exit")
    a("v_and_b32 v60, 7, v0")
    a("v_lshlrev_b32 v60, 2, v60")
    a("global_load_dword v61, v60, s[26:27] sc1")
    a("s_waitcnt vmcnt(0)")
    a.vm = []
    a("v_cmp_ne_u32 vcc, 1, v61")
    a("s_cbranch_vccz L_spin1_done")
    a("s_sleep 4")
    a("s_branch L_spin1")


late.append(spin1)
stamp("norm")
a.wait(vm=("wq", 0))
a("s_barrier")

WB = 136
KACC = 52


NKD = 3
kvd, dq = dq[:NKD], dq[NKD:]


def kv_role(isk):
    rd = [(f"ds_read_b64_tr_b16 {ar(WB+4*sig+2*q,2)}, {V_KVR} offset:{(32*sig+4*q)*40}", ("kw", sig)) for sig in range(20) for q in range(2)]
    emit(rd[:14])
    rd = rd[14:]
    if isk:
        a(f"s_lshr_b32 {S_T2}, {S_W}, 1")
        a(f"s_lshl_b32 {S_T2}, {S_T2}, 10")
        a(f"v_and_b32 v60, 0x1ff, {V_OM}")
        a("v_lshrrev_b32 v61, 5, v0")
        a("v_lshl_add_u32 v60, v61, 9, v60")
        a(f"v_add_u32 {V_KVS}, {S_T2}, v60")
    else:
        a(f"s_mul_i32 {S_T2}, {S_W}, 768")
        a(f"s_and_b32 {S_T3}, {S_J}, 1")
        a(f"v_and_b32 v60, 2, {V_T16}")
        a("v_add_u32 v60, 16, v60")
        a(f"v_mad_u32_u24 v60, v60, {S_T3}, {V_T16}")
        a("v_lshrrev_b32 v61, 5, v0")
        a("v_mul_u32_u24 v61, 384, v61")
        a("v_lshl_add_u32 v60, v60, 4, v61")
        a(f"s_add_u32 {S_T2}, {S_T2}, 3072")
        a(f"v_add_u32 {V_KVS}, {S_T2}, v60")
    a.wait(lg=("kw", 0))
    d = list(kvd)
    for sig in range(20):
        w = ar(WB + 4 * sig, 4)
        x = vr(XF + 4 * sig, 4)
        c = "0" if sig == 0 else vr(KACC, 4)
        A, B = (w, x) if isk else (x, w)
        a(f"v_mfma_f32_16x16x32_bf16 {vr(KACC,4)}, {A}, {B}, {c}")
        if sig < 19:
            a.wait(lg=("kw", sig + 1))
        emit(rd[:2])
        rd = rd[2:]
        if sig in (2, 9, 14):
            emit(d.pop(0))


snap = a.snapshot()
a(f"s_cmp_gt_u32 {S_J}, 3")
a("s_cbranch_scc1 L_nokv")
a(f"s_cmp_gt_u32 {S_J}, 1")
a("s_cbranch_scc1 L_vrole")
kv_role(True)
a("s_branch L_kvfin")
a.label("L_vrole")
a.restore(snap)
kv_role(False)
a.label("L_kvfin")
a(f"s_mul_i32 {S_T1}, {S_TB}, {KV_BLK}")
a(f"s_lshl_b32 {S_T3}, {S_W}, 7")
a(f"s_add_u32 {S_T3}, {S_T3}, {S_T1}")
a(f"s_cmp_eq_u32 {S_J}, 3")
a(f"s_cselect_b32 {S_T2}, 0xf, 0xffff")
a("s_nop 2")
a(f"v_cvt_pk_bf16_f32 v60, v{KACC}, v{KACC+1}")
a(f"v_cvt_pk_bf16_f32 v61, v{KACC+2}, v{KACC+3}")
a(f"s_cmp_eq_u32 {S_J}, 1")
a("v_permlane16_swap_b32 v60, v62")
a("v_permlane16_swap_b32 v61, v63")
a("v_min_u32 v60, -2, v60")
a(f"s_mov_b32 exec_lo, {S_T2}")
a("s_cbranch_scc1 L_ktail")
a(f"s_mov_b32 exec_hi, {S_T2}")
a(f"buffer_store_dwordx4 v[60:63], {V_KVS}, {sWS}, {S_T1} offen sc1")
a("s_branch L_kvdone")
a.label("L_nokv")
a.restore(snap)
emit(kvd)
snap = a.snapshot()
a("s_branch L_kvdone")
a.label("L_ktail")
a("s_mov_b32 exec_hi, 0")
a(f"buffer_store_dwordx2 v[60:61], {V_L8}, {sWS}, {S_T3} offen offset:2048 sc1")
a.label("L_kvdone")
a("s_mov_b64 exec, -1")
a.restore(snap)
stamp("kv")

KVB = (96, 122)


def kv_pre(it):
    return [f"s_add_u32 {S_T0}, {S_KV0}, {4*it}", f"s_and_b32 {S_T0}, {S_T0}, 31", f"s_mul_i32 {S_KVB}, {S_T0}, {KV_BLK}"]


def kv_loads(buf, it):
    b = KVB[buf]
    t = ("kv", it)
    L = [(f"buffer_load_dwordx2 {vr(b+8,2)}, {V_L8}, {sWS}, {S_KVB} offen offset:2048 sc1", t)]
    for kt in range(2):
        L.append((f"buffer_load_dwordx4 {vr(b+4*kt,4)}, {V_L16}, {sWS}, {S_KVB} offen offset:{1024*kt} sc1", t))
    for kg in range(4):
        L.append((f"buffer_load_dwordx4 {vr(b+10+4*kg,4)}, {V_VA}, {sWS}, {S_KVB} offen offset:{768*kg} sc1", t))
    return L


def kv_check(buf, it, tmp):
    b = KVB[buf]
    return check_parts([b, b + 4, b + 8, b + 10, b + 14, b + 18, b + 22], tmp, kv_loads(buf, it), f"kv{it}")


QACC = 32


OV = 148


def wq_read(n):
    sig, ct = divmod(n, 5)
    st, wv = sig // 4, sig % 4
    if st < 2:
        ad, off = WQR, sig * 6144
    elif wv < 3:
        ad, off = WQR + 2, wv * 20480 + (st - 2) * 6144
    else:
        ad, off = WQR + 4, (st - 2) * 6144
    L = []
    if n == 60:
        L += [f"v_mfma_f32_32x32x4_2b_bf16 {vr(OV,32)}, v[94:95], v[94:95], 0"]
    if n % 20 == 0 and n:
        L += [lambda: a.wait(vm=("wq", st)), "s_barrier"]
    L += [(f"ds_read_b64_tr_b16 {ar(WB+4*(n%30)+2*q,2)}, v{ad+(ct&1)} offset:{off+(ct>>1)*2048+q*1024}", ("wf", n)) for q in range(2)]
    return L


LA = 7
for n in range(LA):
    emit(wq_read(n))
emit(second)
kvq = [kv_pre(0)] + [[x] for x in kv_loads(0, 0)]
a.wait(lg=("wf", 0))
for n in range(100):
    sig, ct = divmod(n, 5)
    c = "0" if sig == 0 else vr(QACC + 4 * ct, 4)
    a(f"v_mfma_f32_16x16x32_bf16 {vr(QACC+4*ct,4)}, {ar(WB+4*(n%30),4)}, {vr(XF+4*sig,4)}, {c}")
    if n < 99:
        a.wait(lg=("wf", n + 1))
    if n + LA < 100:
        emit(wq_read(n + LA))
    if n % 4 == 0 and dq:
        emit(dq.pop(0))
    if n >= opt("kvat", 76) and n % 2 == 0 and kvq:
        emit(kvq.pop(0))
assert not dq and not kvq
QS = math.log2(math.e) / math.sqrt(20.0)
a(f"s_mov_b32 {S_C0}, {f2u(QS):#x}")
a(f"s_mov_b32 {S_C1}, {f2u(QS):#x}")
for ct in range(5):
    b = QACC + 4 * ct
    a(f"v_pk_mul_f32 {vr(b,2)}, {vr(b,2)}, s[90:91]")
    a(f"v_pk_mul_f32 {vr(b+2,2)}, {vr(b+2,2)}, s[90:91]")
    a(f"v_cvt_pk_bf16_f32 v{b}, v{b}, v{b+1}")
    a(f"v_cvt_pk_bf16_f32 v{b+1}, v{b+2}, v{b+3}")
    a(f"ds_write_b64 v{QW+(ct==2)}, {vr(b,2)} offset:{32*ct+(8192-80 if ct > 2 else 0)}")
a.wait(lg="all")
a("s_barrier")
QA = 96
for sl in (1, 2, 3, 0):
    a(f"ds_read_b64 {ar(QA+10*sl+8,2)}, v{QR+4+sl} offset:32", tag=("q", sl))
    a(f"ds_read2_b64 {ar(QA+10*sl,4)}, v{QR+sl} offset0:0 offset1:1", tag=("q", sl))
    a(f"ds_read2_b64 {ar(QA+10*sl+4,4)}, v{QR+sl} offset0:5 offset1:6", tag=("q", sl))
a.wait(vm=("kv", 0))
emit(kv_check(0, 0, 60))
a.wait(lg=("q", 1))
stamp("q")

SB = (32, 64)
ORDER = (1, 2, 3, 0)
RCV = 96


def oacc(sl, tile):
    return ("v", OV + 16 * tile) if sl == 0 else ("a", 32 * (sl - 1) + 16 * tile)


def unit_of(u):
    it, r = divmod(u, 8)
    return it, ORDER[r // 2], r & 1


def M4(u, sbuf):
    it, sl, kt = unit_of(u)
    return f"v_mfma_f32_32x32x4_2b_bf16 {vr(sbuf,32)}, {vr(KVB[it&1]+8,2)}, {ar(QA+10*sl+8,2)}, 0 cbsz:1 abid:{kt}"


def M16(u, sbuf, tile):
    it, sl, kt = unit_of(u)
    d = vr(sbuf + 16 * tile, 16)
    return f"v_mfma_f32_32x32x16_bf16 {d}, {vr(KVB[it&1]+4*kt,4)}, {ar(QA+10*sl+4*tile,4)}, {d}"


def SM(u, sbuf, k):
    it, sl, kt = unit_of(u)
    tile, half = k >> 1, k & 1
    return f"v_smfmac_f32_32x32x32_bf16 {rr(oacc(sl,tile),16)}, {vr(KVB[it&1]+10+4*(2*kt+half),4)}, {vr(sbuf+8*k,8)}, {V_IDX}"


side = {}


def put(u, slot, items):
    side.setdefault((u, slot), []).extend(items)


SMS = ("p3", "s0", "s1", "s2")
free_slots = [(u, s) for u in range(64) for s in SMS]
used = set()


def take(u0):
    for us in free_slots:
        if us[0] >= u0 and us not in used:
            used.add(us)
            return us
    raise RuntimeError("no slot")


for it in range(7):
    pre = kv_pre(it + 1)
    u = 8 * it
    used.add((u, "p3"))
    put(u, "p3", pre[:2])
    put(u, "s0", pre[2:])
    for x in kv_loads((it + 1) & 1, it + 1):
        put(*take(u), [x])
    used.add((u + 6, "s2"))
    used.add((u + 7, "p3"))
    ck = kv_check((it + 1) & 1, it + 1, 27)
    put(u + 6, "s2", [lambda it=it: a.wait(vm=("kv", it + 1))] + ck[:-1])
    put(u + 7, "p3", ck[-1:])
put(0, "a", [lambda: a.wait(lg="all")])


def w1reg(k):
    if k < 15:
        return ("a", 136 + 8 * k)
    if k < 24:
        return ("v", 184 + 8 * (k - 15))
    return ("a", 72 + 8 * (k - 24))


def w1_dma(k, base=S_W1L, off=None):
    off = (k % 4) * 2048 if off is None else off
    return [dma(V_W1D, sW1, S_W1G, (16 * k + 8 * b) * 3072, base, off + b * 1024, ("w1", k)) for b in range(2)]


def w1_read(k, ad=W1R, off=None):
    off = (k % 4) * 2048 if off is None else off
    return [(f"ds_read_b64_tr_b16 {rr(w1reg(k),2,4*b+2*q)}, v{ad+b} offset:{off+q*512}", ("w1f", k)) for b in range(2) for q in range(2)]


for k in range(28):
    u = 2 + 2 * k
    d = w1_dma(k)
    if k >= 4:
        d[0] = [lambda k=k: a.wait(lg=("w1f", k - 4))] + d[0]
    for x in d:
        us = take(u)
        assert us[0] <= u + 2
        put(*us, x)
    if k < 24:
        r = w1_read(k)
        put(u + 7, "a", [lambda k=k: a.wait(vm=("w1", k))] + r[:2])
        put(u + 7, "b", r[2:])
put(1, "a", ["v_mov_b64 v[28:29], -1"])
put(1, "b", ["v_mov_b64 v[30:31], -1"])
put(0, "b", [f"s_mul_i32 {S_PF}, s2, 28672", f"s_mul_i32 {S_T1}, {S_W}, 7168"])
put(1, "a", [f"s_add_u32 {S_PF}, {S_PF}, {S_T1}"])
for i in range(7):
    put(*take(2 + opt("pfstep", 0) * i), [f"s_add_u32 {S_T0}, {S_PF}, {BIG + i*1024}",
                   (f"buffer_store_dwordx4 v[28:31], {V_L16}, {sWS}, {S_T0} offen sc1", "pf")])


def arrive():
    assert "pf" not in a.vm
    sn = a.snapshot()
    a("s_barrier")
    a(f"s_cmp_lg_u32 {S_W}, 0")
    a("s_cbranch_scc1 L_noarrive")
    a(f"s_lshl_b32 {S_T0}, {S_TB}, 2")
    a(f"s_add_u32 {S_T0}, {S_T0}, 64")
    a(f"v_mad_u32_u24 v28, v0, {S_T0}, 64")
    a(f"v_mul_u32_u24 v29, {S_FAST}, v0")
    a("v_lshlrev_b32 v29, v29, 1")
    a("s_mov_b64 exec, 3")
    a("global_atomic_add v28, v29, s[26:27]")
    a("s_mov_b64 exec, -1")
    a.label("L_noarrive")
    a.restore(sn)


put(*take(opt("arrive", 18)), [arrive])
put(2, "a", [f"s_mul_i32 {S_B1}, {S_J}, 160"])
put(2, "b", [f"s_mul_i32 {S_T1}, {S_W}, {40*1280}"])
put(3, "a", [f"s_add_u32 {S_B0}, {S_B1}, {S_T1}"])
put(3, "b", [f"s_mul_i32 {S_T1}, {S_W}, {160*1280}"])
put(4, "a", [f"s_add_u32 {S_B1}, {S_B1}, {S_T1}"])
put(4, "b", [f"s_mul_i32 {S_B2}, {S_W}, 5120"])
put(5, "a", [f"s_getreg_b32 {S_FAST}, hwreg(HW_REG_XCC_ID, 0, 3)"])
put(5, "b", [f"s_lshl_b32 {S_FAST}, {S_FAST}, 2"])
for i in range(5):
    for ct in range(5):
        if i < 4:
            d = dma(f"v{WOA}", sWO, S_B0, i * 160 * 1280 + 32 * ct, S_B2, L_WO + i * 20480 + ct * 1024, "wo")
        else:
            d = dma(f"v{WOA+1}", sWO, S_B1, 16 * 1280 + 32 * ct, S_B2, L_WO + 16 * 5120 + ct * 1024, "wo")
        us = take(6 + 7 * i)
        assert us[0] < 46
        put(*us, d)
for ct in range(5):
    us = take(42)
    assert us[0] < 48
    put(*us, [(f"buffer_load_dwordx2 {vr(XR+2*ct,2)}, {V_XRA}, {sX}, {S_XO} offen offset:{32*ct}", "xr")])


def later_scalars():
    a(f"s_mul_i32 {S_T3}, {S_TB}, {O_BLK}")
    a(f"s_add_u32 {S_T3}, {S_T3}, {O_BASE}")
    a(f"s_and_b32 {S_T1}, {S_W}, 1")
    a(f"s_lshl_b32 {S_T1}, {S_T1}, 4")
    a(f"s_lshr_b32 {S_T2}, {S_W}, 1")
    a(f"s_add_u32 {S_T1}, {S_T1}, {S_T2}")
    a(f"s_lshl_b32 {S_OPM}, {S_J}, 1")
    a(f"s_add_u32 {S_T1}, {S_T1}, {S_OPM}")
    a(f"s_lshl_b32 {S_OPM}, {S_T1}, 11")
    a(f"s_add_u32 {S_OPM}, {S_OPM}, {S_T3}")
    a(f"s_lshl_b32 {S_OPL}, {S_T1}, 9")
    a(f"s_add_u32 {S_OPL}, {S_OPL}, {S_T3}")
    a(f"s_add_u32 {S_OPL}, {S_OPL}, 65536")
    a(f"s_lshl_b32 {S_OLM}, {S_T2}, 15")
    a(f"s_add_u32 {S_OLM}, {S_OLM}, {S_T3}")
    a(f"s_lshl_b32 {S_OLL}, {S_T2}, 13")
    a(f"s_add_u32 {S_OLL}, {S_OLL}, {S_T3}")
    a(f"s_add_u32 {S_OLL}, {S_OLL}, 65536")
    a(f"s_lshl_b32 {S_T1}, {S_TB}, 2")
    a(f"s_add_u32 {S_T1}, {S_T1}, {S_W}")
    a(f"s_lshl_b32 {S_T1}, {S_T1}, 10")
    a(f"s_add_u32 {S_STB}, {S_T1}, {ST_BASE}")
    a(f"s_add_u32 {S_HNB}, {S_T1}, {HN_BASE}")
    a(f"s_lshl_b32 {S_STW}, {S_J}, 7")
    a(f"s_add_u32 {S_STW}, {S_STW}, {S_STB}")
    a(f"s_mul_i32 {S_W2G}, {S_W}, {384*4096}")
    a(f"s_lshl_b32 {S_T1}, {S_TB}, 7")
    a(f"s_add_u32 {S_W2G}, {S_W2G}, {S_T1}")
    a(f"s_mul_i32 {S_LW}, {S_W}, 25600")
    a(f"s_mul_i32 {S_REDW}, {S_W}, 6144")
    a(f"s_add_u32 {S_REDW}, {S_REDW}, {L_RED}")
    srd(sW2, 20, 1536 * 4096)
    srd(sOUT, 24, 2048 * 1280)


ls = capture(later_scalars)
for i, x in enumerate(ls):
    assert 6 + 2 * (i // 2) < 44
    put(6 + 2 * (i // 2), "ab"[i & 1], [x])
put(44, "a", ["v_lshlrev_b32 v28, 12, v0"])
put(44, "b", ["v_mul_u32_u24 v29, 3072, v0"])
put(46, "a", [f"s_mul_i32 {S_T1}, {S_J}, {48*4096}"])
put(46, "b", [f"s_add_u32 {S_T1}, {S_T1}, {S_W2G}"])
put(*take(47), ["s_mov_b32 exec_hi, 0xffff", (f"buffer_load_dword v180, v28, {sW2}, {S_T1} offen", "touch"), "s_mov_b32 exec_hi, -1"])
put(*take(51), [f"s_add_u32 {S_T0}, {S_W1G}, {448*3072}", (f"buffer_load_dword v181, v29, {sW1}, {S_T0} offen", "touch")])
put(54, "a", [f"s_lshl_b32 {S_T1}, {S_TB}, 2"])
put(54, "b", [f"s_add_u32 {S_T1}, {S_T1}, 128"])
put(56, "a", [lambda: a.wait(lg="all"), f"s_load_dword {S_CNT}, s[26:27], 64"])
put(56, "b", [f"s_load_dword {S_GRP}, s[26:27], {S_T1}"])
put(57, "a", [f"s_lshl_b32 {S_FAST}, 8, {S_FAST}"])
put(57, "s2", [lambda: a.wait(lg="all")])


def red_write(sl):
    return [(f"ds_write_b128 v{V_RW+sl-1}, {rr(oacc(sl,t),4,4*i)} offset:{t*3072+i*1024}", "rw") for t in range(2) for i in range(3)]


rds = [(f"ds_read_b128 {vr(RCV+4*i,4)}, {V_RR} offset:{i*1024}", "rr") for i in range(6)]
radd = [f"v_pk_add_f32 {vr(OV+16*t+r,2)}, {vr(OV+16*t+r,2)}, {vr(RCV+12*t+r,2)}" for t in range(2) for r in range(0, 12, 2)]
for sl in (1, 2, 3):
    u = 56 + 2 * sl
    if sl > 1:
        put(u, "p3", ["s_barrier"])
    for x, slot in zip(red_write(sl), ("p3", "s0", "s1", "a", "b", "s2")):
        put(u, slot, [x])
    put(u + 1, "s0", [lambda: a.wait(lg="all"), "s_barrier"] + rds[:3])
    put(u + 1, "s1", ["s_nop 0"] + rds[3:])
    if sl < 3:
        put(u + 1, "s2", [lambda: a.wait(lg="all")] + radd)

a(M4(0, SB[0]))
a(M16(0, SB[0], 0))
a(M16(0, SB[0], 1))
for u in range(64):
    A, B = SB[u & 1], SB[(u + 1) & 1]
    e = iter(range(32))

    def ex(n):
        for _ in range(n):
            k = next(e)
            a(f"v_exp_f32 v{A+k}, v{A+k}")

    def sd(slot):
        emit(side.pop((u, slot), []))
    last = u == 63
    if u % 8 == 0 and u:
        stamp(f"it{u//8}")
    ex(2)
    if u:
        a(SM(u - 1, B, 3))
    sd("p3")
    ex(3)
    if not last:
        a(M4(u + 1, B))
    ex(8)
    a(SM(u, A, 0))
    sd("s0")
    ex(5)
    a(SM(u, A, 1))
    sd("s1")
    ex(3)
    if not last:
        a(M16(u + 1, B, 0))
    sd("a")
    ex(3)
    if not last:
        a(M16(u + 1, B, 1))
    sd("b")
    ex(3)
    a(SM(u, A, 2))
    sd("s2")
    ex(5)
assert not side, side.keys()
OP = 136
LO, HI = (127 - 60) << 23, (127 + 60) << 23


def o_finish(t):
    for r in range(0, 12, 2):
        a(f"v_pk_add_f32 {vr(OV+16*t+r,2)}, {vr(OV+16*t+r,2)}, {vr(RCV+12*t+r,2)}")
    a(f"v_rcp_f32 v32, v{OV+16*t+10}")
    a(f"v_subrev_u32 v{36+t}, {LO:#x}, v{OV+16*t+10}")
    for r in range(0, 10, 2):
        a(f"v_pk_mul_f32 {vr(OV+16*t+r,2)}, {vr(OV+16*t+r,2)}, v[32:33] op_sel_hi:[1,0]")
    for r in range(4):
        a(f"v_cvt_pk_bf16_f32 v{OP+4*t+r}, v{OV+16*t+2*r}, v{OV+16*t+2*r+1}")
    a(f"v_cvt_pk_bf16_f32 v{OP+8+t}, v{OV+16*t+8}, v{OV+16*t+9}")
    a(f"v_min_u32 v{OP+4*t}, -2, v{OP+4*t}")


a.wait(lg="all")
a(SM(63, SB[1], 3))
a.label("L_attn_sum")
o_finish(0)
o_finish(1)
a("v_max_u32 v36, v36, v37")
a(f"v_cmp_lt_u32 vcc, {HI-LO:#x}, v36")
a(f"v_permlane32_swap_b32 v{OP+8}, v{OP+10}")
a(f"v_permlane32_swap_b32 v{OP+9}, v{OP+11}")
a(f"v_min_u32 v{OP+8}, -2, v{OP+8}")
stamp("attn")
a("s_cmp_lg_u64 vcc, 0")
a(f"s_cselect_b32 {S_T2}, 1, 0")
if FORCE_FB:
    a(f"s_mov_b32 {S_T2}, 1")
a(f"s_cmp_ge_u32 {S_CNT}, 256")
a("s_cbranch_scc0 L_spin2")
a.label("L_spin2_done")


def spin2():
    a.label("L_spin2")
    a(f"s_sub_u32 {S_RETRY}, {S_RETRY}, 1")
    a("s_cbranch_scc1 L_exit")
    a("v_mov_b32 v36, 64")
    a("global_load_dword v37, v36, s[26:27] sc1")
    a("s_waitcnt vmcnt(0)")
    a.vm = []
    a(f"v_readfirstlane_b32 {S_CNT}, v37")
    a("s_nop 1")
    a(f"s_cmp_ge_u32 {S_CNT}, 256")
    a("s_cbranch_scc1 L_spin2_done")
    a("s_sleep 4")
    a("s_branch L_spin2")


late.append(spin2)


def o_pub(fl, tag):
    return [(f"buffer_store_dwordx4 {vr(OP,4)}, {V_L16}, {sWS}, {S_OPM} offen {fl}", tag),
            (f"buffer_store_dwordx4 {vr(OP+4,4)}, {V_L16}, {sWS}, {S_OPM} offen offset:1024 {fl}", tag),
            "s_mov_b32 exec_hi, 0",
            (f"buffer_store_dwordx4 {vr(OP+8,4)}, {V_L16}, {sWS}, {S_OPL} offen {fl}", tag),
            "s_mov_b32 exec_hi, -1"]


def two_ways(pub, tag, name):
    if not FASTHOP:
        emit(pub("sc1", tag))
        return
    a(f"s_cmp_lg_u32 {S_GRP}, {S_FAST}")
    a(f"s_cbranch_scc1 L_wt{name}")
    emit(pub("", tag))
    a.label(f"L_wtd{name}")

    def ool():
        a.label(f"L_wt{name}")
        emit(pub("sc1", None))
        a("s_waitcnt vmcnt(0)")
        a.vm = []
        a(f"s_branch L_wtd{name}")
    late.append(ool)


a(f"s_andn2_b32 {S_T2}, {S_T2}, {S_FBI}")
a("s_cbranch_scc1 L_nopub")
two_ways(o_pub, "opub", "o")
a.label("L_nopub")
a(f"s_lshl_b32 {S_T0}, {S_W}, 2")
a(f"s_add_u32 {S_T0}, {S_T0}, {L_FLAG}")
a(f"v_mov_b32 v36, {S_T0}")
a(f"v_mov_b32 v37, {S_T2}")
a("ds_write_b32 v36, v37")
a(f"v_mov_b32 v36, {L_FLAG}")
a.wait(lg="all")
a("s_barrier")
a("ds_read_b128 v[28:31], v36")
H = 112
for ct in range(5):
    s0, s1 = XR + 2 * ct, XR + 2 * ct + 1
    a(f"v_lshlrev_b32 v{H+4*ct}, 16, v{s0}")
    a(f"v_and_b32 v{H+4*ct+1}, {S_MASK}, v{s0}")
    a(f"v_lshlrev_b32 v{H+4*ct+2}, 16, v{s1}")
    a(f"v_and_b32 v{H+4*ct+3}, {S_MASK}, v{s1}")
a.wait(lg="all")
a("v_or3_b32 v28, v28, v29, v30")
a("v_or_b32 v28, v28, v31")
a("v_cmp_ne_u32 vcc, 0, v28")
a("s_cbranch_vccnz L_fallback")


def fallback():
    MX = 124
    a.label("L_fallback")
    a("s_waitcnt vmcnt(0) lgkmcnt(0)")
    a.vm = []
    a.lg = []
    a(f"s_mov_b32 {S_FBI}, 1")
    for k in range(8):
        a(f"v_mov_b32 v{MX+k}, 0xff800000")
    for ps in range(2):
        a(f"s_mov_b32 {S_T3}, 0")
        a.label(f"L_fb{ps}")
        a(f"s_add_u32 {S_T0}, {S_KV0}, {S_T3}")
        a(f"s_and_b32 {S_T0}, {S_T0}, 31")
        a(f"s_mul_i32 {S_KVB}, {S_T0}, {KV_BLK}")
        a("s_nop 15")
        emit(kv_loads(0, 0))
        a.wait(vm="all")
        for r in range(8):
            sl = ORDER[r // 2]
            S = SB[0]
            a(M4(r, S))
            a(M16(r, S, 0))
            a(M16(r, S, 1))
            if ps == 0:
                for t in range(2):
                    m = MX + 2 * sl + t
                    for k in range(0, 16, 2):
                        a(f"v_max3_f32 v{m}, v{m}, v{S+16*t+k}, v{S+16*t+k+1}")
            else:
                for k in range(32):
                    a(f"v_sub_f32 v{S+k}, v{S+k}, v{MX+2*sl+(k>>4)}")
                for k in range(32):
                    a(f"v_exp_f32 v{S+k}, v{S+k}")
                for k in range(4):
                    a(SM(r, S, k))
        a(f"s_add_u32 {S_T3}, {S_T3}, 4")
        a(f"s_cmp_lt_u32 {S_T3}, 32")
        a(f"s_cbranch_scc1 L_fb{ps}")
        if ps == 0:
            for k in range(8):
                a(f"v_mov_b32 v64, v{MX+k}")
                a(f"v_permlane32_swap_b32 v{MX+k}, v64")
                a(f"v_max_f32 v{MX+k}, v{MX+k}, v64")
            a("v_and_b32 v64, 31, v0")
            a("v_lshlrev_b32 v64, 2, v64")
            a(f"s_lshl_b32 {S_T1}, {S_W}, 10")
            for sl in range(4):
                a(f"s_xor_b32 {S_T0}, {S_W}, {sl}")
                a(f"s_lshl_b32 {S_T0}, {S_T0}, 8")
                a(f"s_add_u32 {S_T0}, {S_T0}, {L_RED}")
                a(f"v_add_u32 v{66+sl}, {S_T0}, v64")
                a(f"v_add_u32 v65, {S_T1}, v{66+sl}")
                a(f"ds_write_b32 v65, v{MX+2*sl}")
                a(f"ds_write_b32 v65, v{MX+2*sl+1} offset:128")
            a.wait(lg="all")
            a("s_barrier")
            for sl in range(4):
                for t in range(2):
                    for wv in range(4):
                        a(f"ds_read_b32 v{72+wv}, v{66+sl} offset:{wv*1024+t*128}")
                    a.wait(lg="all")
                    a(f"v_max3_f32 v72, v72, v73, v74")
                    a(f"v_max_f32 v{MX+2*sl+t}, v72, v75")
            a("s_barrier")
            for r in range(96):
                a(f"v_accvgpr_write_b32 a{r}, 0")
            for r in range(32):
                a(f"v_mov_b32 v{OV+r}, 0")
    a("s_nop 15")
    for sl in (1, 2, 3):
        emit(red_write(sl))
        a.wait(lg="all")
        a("s_barrier")
        emit(rds)
        a.wait(lg="all")
        if sl < 3:
            emit(radd)
            a("s_barrier")
    a("s_branch L_attn_sum")


late.append(fallback)

OF = 32
V_WO1 = "v27"
WOF = 0
NWO = 34


def o_loads(bt, st=S_T1):
    L = []
    for m in range(4 * bt, 4 * bt + 4):
        g = []
        if m % 2 == 0:
            g.append(f"s_add_u32 {st}, {S_OLM}, {m*2048}" if bt < 4 else f"s_add_u32 {st}, {S_OLL}, {(m-16)*2048}")
        g.append((f"buffer_load_dwordx4 {vr(OF+4*m,4)}, {V_OM}, {sWS}, {st} offen offset:{(m%2)*2048} sc1", ("o", bt)))
        L.append(g)
    return L


def wo_read(n):
    sig, ct = divmod(n, 5)
    ad, off = (V_L8, sig * 5120) if sig < 12 else (V_WO1, (sig - 12) * 5120)
    return [(f"ds_read_b64_tr_b16 {ar(WOF+4*(n%NWO)+2*q,2)}, {ad} offset:{off+ct*1024+q*512}", ("wof", n)) for q in range(2)]


def o_check(bt):
    return [lambda: a.wait(vm=("o", bt))] + check_parts([OF + 4 * s for s in range(4 * bt, 4 * bt + 4)], 28, o_loads(bt, S_RT), f"o{bt}")


a(f"v_add_u32 {V_WO1}, {12*5120}, {V_L8}")
ol = [g for bt in range(5) for g in o_loads(bt)]
pre = [wo_read(n) for n in range(NWO - 1)]
if not FASTHOP:
    emit(pre[:16])
    pre = pre[16:]
    a.wait(vm="opub")
stamp("oack")
pre = weave(ol[:10], pre, 3)
emit(pre)
ol = ol[10:]
tail = [x for k in range(28, 31) for x in w1_dma(k, S_REDW, (k - 28) * 2048)]
nread = NWO - 1
emit(o_check(0))
stamp("o0")
a.wait(lg=("wof", 0))
ck = []
for n in range(100):
    sig, ct = divmod(n, 5)
    a(f"v_mfma_f32_16x16x32_bf16 {vr(H+4*ct,4)}, {ar(WOF+4*(n%NWO),4)}, {vr(OF+4*sig,4)}, {vr(H+4*ct,4)}")
    w = a.wait_text(lg=("wof", n + 1)) if n < 99 else None
    if w:
        a(w)
    if n % 20 == 14 and n < 80:
        ck = o_check(n // 20 + 1)
        emit(ck[:2])
        ck = ck[2:]
    elif ck and n % 20 != 17:
        emit(ck[:1])
        ck = ck[1:]
    elif n % 4 == 0 and ol:
        emit(ol.pop(0))
    elif n % 5 == 0 and not ol and tail and n > 55:
        emit(tail.pop(0))
    elif nread < 100:
        if not w:
            a("s_nop 0")
        emit(wo_read(nread))
        nread += 1
    if nread < 100 and nread - n <= 7:
        emit(wo_read(nread))
        nread += 1
    assert nread == 100 or nread - n > 4
    assert n % 20 != 19 or not ck
assert not ol and not tail and nread == 100
a(f"v_pk_add_f32 v[60:61], {vr(H,2)}, {vr(H+2,2)}")
a(f"v_pk_mul_f32 v[62:63], {vr(H,2)}, {vr(H,2)}")
a(f"v_pk_fma_f32 v[62:63], {vr(H+2,2)}, {vr(H+2,2)}, v[62:63]")
for r in range(4, 20, 2):
    a(f"v_pk_add_f32 v[60:61], v[60:61], {vr(H+r,2)}")
    a(f"v_pk_fma_f32 v[62:63], {vr(H+r,2)}, {vr(H+r,2)}, v[62:63]")
a("v_add_f32 v60, v60, v61")
a("v_add_f32 v61, v62, v63")
xreduce([60, 61], 64)
a("v_min_u32 v61, -2, v61")


def st_pub(fl, tag):
    return ["s_mov_b64 exec, 0xffff",
            (f"buffer_store_dwordx2 v[60:61], {V_L8}, {sWS}, {S_STW} offen {fl}", tag),
            "s_mov_b64 exec, -1"]


two_ways(st_pub, "stpub", "st")
stamp("oproj")
st_ld = [(f"buffer_load_dwordx2 v[64:65], {V_L8}, {sWS}, {S_STB} offen sc1", "st"),
         (f"buffer_load_dwordx2 v[66:67], {V_L8}, {sWS}, {S_STB} offen offset:512 sc1", "st")]
for k in range(24, 28):
    emit(w1_read(k))
V_IW, V_IR, HNA = "v68", "v69", 70
a(f"v_mul_u32_u24 v76, 176, {V_T16}")
a(f"v_lshl_add_u32 v76, {V_G}, 3, v76")
a(f"v_add_u32 {V_IW}, {S_W1L}, v76")
a("v_bfe_u32 v76, v0, 2, 2")
a(f"v_and_b32 v77, 1, {V_G}")
a("v_lshl_add_u32 v76, v77, 3, v76")
a("v_mul_u32_u24 v76, 176, v76")
a(f"v_lshrrev_b32 v78, 1, {V_G}")
a("v_lshl_add_u32 v76, v78, 5, v76")
a("v_and_b32 v79, 3, v0")
a("v_lshl_add_u32 v76, v79, 3, v76")
a(f"v_add_u32 {V_IR}, {S_W1L}, v76")
if not FASTHOP:
    a.wait(vm="stpub")
stamp("stack")
emit(st_ld)
a(f"s_mul_i32 {S_T1}, {S_J}, 5")
a("v_lshlrev_b32 v77, 9, v77")
a(f"v_lshl_add_u32 v77, {V_T16}, 4, v77")
a(f"v_add_u32 v78, {S_T1}, v78")
for i in range(3):
    a(f"v_add_u32 v79, {2*i}, v78")
    a("v_lshrrev_b32 v80, 1, v79")
    a("v_and_b32 v79, 1, v79")
    a("v_lshl_add_u32 v80, v80, 17, v77")
    a(f"v_lshl_add_u32 v{HNA+i}, v79, 8, v80")
a(f"s_sub_u32 {S_T1}, {S_W1L}, {S_REDW}")
a(f"v_subrev_u32 v74, {S_T1}, v{W1R}")
a(f"v_subrev_u32 v75, {S_T1}, v{W1R+1}")
a.wait(vm=("w1", 30))
for k in range(28, 31):
    emit(w1_read(k, 74, (k - 28) * 2048))
a.wait(vm="st")
emit(check_parts([65, 67], 28, st_ld, "st"))
a("v_add_f32 v64, v64, v66")
a("v_add_f32 v65, v65, v67")
xreduce([64, 65], 66)
a(f"v_mul_f32 v64, {f2u(1/640):#x}, v64")
a(f"v_mul_f32 v65, {f2u(1/640):#x}, v65")
a("v_fma_f32 v65, -v64, v64, v65")
a("v_max_f32 v65, 0, v65")
a(f"v_add_f32 v66, {f2u(1e-5):#x}, v65")
a(f"v_fmac_f32 v65, {f2u(1e-5):#x}, v66")
a("v_rsq_f32 v62, v65")
a("v_mul_f32 v63, -v64, v62")
for ct in range(5):
    for p in range(2):
        a(f"v_pk_fma_f32 {vr(32+4*ct+2*p,2)}, {vr(H+4*ct+2*p,2)}, v[62:63], v[62:63] op_sel:[0,0,1] op_sel_hi:[1,0,1]")
    a(f"v_cvt_pk_bf16_f32 v{32+4*ct}, v{32+4*ct}, v{33+4*ct}")
    a(f"v_cvt_pk_bf16_f32 v{33+4*ct}, v{34+4*ct}, v{35+4*ct}")
    a(f"ds_write_b64 {V_IW}, {vr(32+4*ct,2)} offset:{32*ct}")
for i in range(3):
    for q in range(2):
        a(f"ds_read_b64_tr_b16 {vr(76+4*i+2*q,2)}, {V_IR} offset:{q*4*176+i*64}", tag=("hi", i))
for i in range(3):
    a.wait(lg=("hi", i))
    a(f"v_min_u32 v{76+4*i}, -2, v{76+4*i}")
    if i == 2:
        a("s_mov_b32 exec_hi, 0")
    a(f"buffer_store_dwordx4 {vr(76+4*i,4)}, v{HNA+i}, {sWS}, {S_HNB} offen sc1", tag="hnpub")
a("s_mov_b32 exec_hi, -1")
stamp("hnpub")
a("s_barrier")

V_W2D = "v8"
W2R = 9
INB = 102400
RW = 13
V_RIN = "v16"
NW2 = 6


def p3_addr():
    a("v_lshrrev_b32 v88, 3, v0")
    a("v_and_b32 v89, 7, v0")
    a(f"v_lshlrev_b32 v90, 1, {V_G}")
    a("v_xor_b32 v89, v89, v90")
    a("v_lshlrev_b32 v88, 12, v88")
    a(f"v_lshl_add_u32 {V_W2D}, v89, 4, v88")


def p3_addr2():
    a("v_bfe_u32 v88, v0, 2, 3")
    a("v_lshrrev_b32 v89, 1, v88")
    a("v_lshrrev_b32 v90, 5, v0")
    a("v_lshlrev_b32 v90, 11, v90")
    a("v_lshl_add_u32 v90, v88, 7, v90")
    a("v_and_b32 v91, 3, v0")
    a("v_lshl_add_u32 v90, v91, 3, v90")
    a(f"v_add_u32 v90, {S_LW}, v90")
    a(f"v_xor_b32 v89, {S_W}, v89")
    for b in range(4):
        a(f"v_xor_b32 v91, {b}, v89")
        a(f"v_lshl_add_u32 v{W2R+b}, v91, 5, v90")
    for dl in range(4):
        a(f"s_xor_b32 {S_T1}, {S_W}, {dl}")
        a(f"s_mul_i32 {S_T1}, {S_T1}, 15360")
        a(f"s_add_u32 {S_T1}, {S_T1}, {INB + max(dl-1,0)*5120}")
        a(f"v_add_u32 {V_RIN if dl == 0 else vr(RW+dl-1)}, {S_T1}, {V_L16}")


def w2_dma(k):
    return [dma(V_W2D, sW2, S_W2G, (32 * k + 8 * b) * 4096, S_LW, (k % NW2) * 4096 + b * 1024, ("w2", k)) for b in range(4)]


def w2reg(k):
    if k < 7:
        return ("a", 136 + 16 * k)
    if k < 11:
        return ("v", 192 + 16 * (k - 7))
    return ("a", 72)


def w2_read(k):
    return [(f"ds_read_b64_tr_b16 {rr(w2reg(k),2,4*b+2*q)}, v{W2R+b} offset:{(k%NW2)*4096+q*1024}", ("w2f", k))
            for b in range(4) for q in range(2)]


p3_addr()
a(f"s_cmp_gt_u32 {S_IDX}, 29")
a("s_cbranch_scc1 L_p3idle")
B1 = 148
ACCO = 132
HS = 32


def p3_addr3():
    p3_addr2()
    a(f"s_lshr_b32 {S_T1}, {S_W}, 1")
    a(f"s_lshl_b32 {S_T1}, {S_T1}, 6")
    a(f"s_lshl_b32 {S_T2}, {S_F}, 7")
    a(f"s_add_u32 {S_T1}, {S_T1}, {S_T2}")
    a("v_lshrrev_b32 v88, 5, v0")
    a("v_lshlrev_b32 v88, 3, v88")
    a(f"v_add_u32 v88, {S_T1}, v88")
    for i in range(4):
        a(f"global_load_dwordx2 {vr(B1+2*i,2)}, v88, s[18:19] offset:{16*i}", tag="b1")
    a(f"s_and_b32 {S_T1}, {S_W}, 1")
    a(f"s_lshl_b32 {S_T2}, {S_D}, 1")
    a(f"s_add_u32 {S_T3}, {S_T1}, {S_T2}")
    a(f"s_lshl_b32 {S_T1}, {S_T3}, 17")
    a(f"s_lshl_b32 {S_T2}, {S_W}, 15")
    a(f"s_add_u32 {S_T1}, {S_T1}, {S_T2}")
    a(f"s_xor_b32 {S_T2}, {S_T1}, 0x20000")
    a(f"s_add_u32 {S_B0}, {S_T1}, {HN_BASE}")
    a(f"s_add_u32 {S_B1}, {S_T2}, {HN_BASE}")
    a("v_bfe_u32 v88, v0, 4, 1")
    a("v_mul_u32_u24 v88, 49152, v88")
    a("v_lshrrev_b32 v89, 5, v0")
    a("v_lshl_add_u32 v88, v89, 8, v88")
    a(f"v_lshl_add_u32 v17, {V_T16}, 4, v88")
    a(f"s_mul_i32 {S_T1}, {S_T3}, 96")
    a(f"s_lshl_b32 {S_T2}, {S_F}, 1")
    a(f"s_add_u32 {S_T1}, {S_T1}, {S_T2}")
    a(f"s_lshr_b32 {S_T2}, {S_W}, 1")
    a(f"s_add_u32 {S_T1}, {S_T1}, {S_T2}")
    a(f"s_lshl_b32 {S_T1}, {S_T1}, 10")
    a(f"s_add_u32 {S_B2}, {S_T1}, {U_BASE}")


NW2A = opt("w2a", 2)
w2q = [x for k in range(12) for x in w2_dma(k)]
rest = weave(w1_dma(31) + w2q[:4 * NW2A], capture(p3_addr3), 8)
emit(rest)
w2q = w2q[4 * NW2A:]


def hn_loads(bt, st=S_T1):
    base = S_B1 if bt < 8 else S_B0
    L = []
    for i in range(4):
        k = 4 * (bt & 7) + i
        g = []
        if i == 0:
            g.append(f"s_add_u32 {st}, {base}, {k*1024}")
        g.append((f"buffer_load_dwordx4 {vr(HS+16*(bt%5)+4*i,4)}, {V_L16}, {sWS}, {st} offen offset:{i*1024} sc1", ("hn", bt)))
        L.append(g)
    return L


a.wait(vm="hnpub")
stamp("hnack")
PRE3 = 4
for bt in range(PRE3):
    emit(hn_loads(bt))
a.wait(vm=("w1", 31))
emit(w1_read(31))
a.wait(lg="all")
a("s_barrier")


def acc3(sa, sb):
    return ("v", ACCO) if (sa, sb) == (0, 0) else ("a", 16 * (2 * sa + sb - 1))


def r3_write(sa, sb, i):
    dl = sa + 2 * sb
    return (f"ds_write_b128 v{RW+dl-1}, {rr(acc3(sa,sb),4,4*i)} offset:{i*1024}", "r3w")


def r3_read(dl, i, dst):
    return (f"ds_read_b128 {vr(dst+4*i,4)}, {V_RIN} offset:{(dl-1)*5120+i*1024}", ("r3r", dl))


RA, RB = 156, 168
NW2B = opt("w2b", 4)
w2done = NW2A


def hn_check(bt):
    return [lambda: a.wait(vm=("hn", bt))] + check_parts([HS + 16 * (bt % 5) + 4 * i for i in range(4)], 28, hn_loads(bt, S_RT), f"hn{bt}")


emit(hn_check(0))
stamp("hn0")
for bt in range(16):
    sa = 1 if bt < 8 else 0
    ck = hn_check(bt + 1) if bt < 15 else None
    extra = []
    if bt == 9:
        extra = [[]] * 2 + [[r3_write(1, 0, i)] for i in range(4)]
    if bt == 10:
        extra = [[r3_write(1, 1, i)] for i in range(4)]
    if bt == 11:
        for i in range(4):
            extra.append([f"v_lshlrev_b32 v{RA+4*i}, 16, v{B1+2*i}", f"v_and_b32 v{RA+4*i+1}, {S_MASK}, v{B1+2*i}"])
            extra.append([f"v_lshlrev_b32 v{RA+4*i+2}, 16, v{B1+2*i+1}", f"v_and_b32 v{RA+4*i+3}, {S_MASK}, v{B1+2*i+1}"])
    if bt == 12:
        a.wait(lg="all")
        a("s_barrier")
    if bt == 13:
        extra = [[r3_read(1, i, HS + 16)] for i in range(4)] + [[r3_read(3, i, HS + 32)] for i in range(4)]
    if bt == 14:
        extra = [[lambda: a.wait(lg="all")]] + [[] for _ in range(7)]
        for i in range(8):
            extra[i] = extra[i] + [f"v_pk_add_f32 {vr(RA+2*i,2)}, {vr(RA+2*i,2)}, {vr(HS+16+2*i,2)}",
                                   f"v_pk_add_f32 {vr(RA+2*i,2)}, {vr(RA+2*i,2)}, {vr(HS+32+2*i,2)}"]
    if bt == 15:
        rd = [x for k in range(NW2A) for x in w2_read(k)]
        per = -(-len(rd) // 8)
        extra = [rd[per * i:per * i + per] for i in range(8)]
    nxt = hn_loads(bt + PRE3) if bt + PRE3 < 16 else []
    n = 0
    for i in range(4):
        k = 4 * (bt & 7) + i
        for b in (1, 0):
            d = rr(acc3(sa, b), 16)
            c = "0" if k == 0 else d
            a(f"v_mfma_f32_32x32x16_bf16 {d}, {rr(w1reg(k),4,4*b)}, {vr(HS+16*(bt%5)+4*i,4)}, {c}")
            if b == 1:
                if nxt:
                    emit(nxt.pop(0))
                elif bt - 12 < NW2B:
                    emit(w2q.pop(0))
            if n < len(extra):
                emit(extra[n])
            if ck and n == 6:
                emit(ck[:-1])
            if ck and n == 7:
                emit(ck[-1:])
            n += 1
w2done += min(NW2B, 4)
GC = math.sqrt(2.0 / math.pi) * 2.0 * math.log2(math.e)
a(f"s_mov_b32 {S_C0}, {f2u(-GC*0.044715):#x}")
a(f"s_mov_b32 {S_C1}, {f2u(-GC*0.044715):#x}")
a(f"v_mov_b32 v28, {f2u(-GC):#x}")
a(f"v_mov_b32 v29, {f2u(-GC):#x}")
for i in range(4):
    emit([r3_write(0, 1, i)])
for i in range(8):
    a(f"v_pk_add_f32 {vr(RA+2*i,2)}, {vr(RA+2*i,2)}, {vr(ACCO+2*i,2)}")
a.wait(lg="all")
a("s_barrier")
for i in range(4):
    x = r3_read(2, i, HS + 16)
    a(x[0], tag=("r3z", i))
stamp("p3mm")
UP = 132
for m in range(2):
    for i in (2 * m, 2 * m + 1):
        a.wait(lg=("r3z", i))
        for p in range(2):
            x = RA + 4 * i + 2 * p
            t = 172 + 2 * p
            a(f"v_pk_add_f32 {vr(x,2)}, {vr(x,2)}, {vr(HS+16+4*i+2*p,2)}")
            a(f"v_pk_mul_f32 {vr(t,2)}, {vr(x,2)}, {vr(x,2)}")
            a(f"v_pk_fma_f32 {vr(t,2)}, {vr(t,2)}, s[90:91], v[28:29]")
            a(f"v_pk_mul_f32 {vr(t,2)}, {vr(t,2)}, {vr(x,2)}")
        for r in range(4):
            a(f"v_exp_f32 v{172+r}, v{172+r}")
        for p in range(2):
            a(f"v_pk_add_f32 {vr(172+2*p,2)}, {vr(172+2*p,2)}, 1.0 op_sel_hi:[1,0]")
        for r in range(4):
            a(f"v_rcp_f32 v{172+r}, v{172+r}")
        for p in range(2):
            a(f"v_pk_mul_f32 {vr(172+2*p,2)}, {vr(172+2*p,2)}, {vr(RA+4*i+2*p,2)}")
        for p in range(2):
            a(f"v_cvt_pk_bf16_f32 v{UP+4*m+2*(i&1)+p}, v{172+2*p}, v{173+2*p}")
    a(f"v_min_u32 v{UP+4*m}, -2, v{UP+4*m}")
    a(f"buffer_store_dwordx4 {vr(UP+4*m,4)}, v17, {sWS}, {S_B2} offen offset:{512*m} sc1", tag="upub")
stamp("upub")
a.label("L_p3join")
assert w2done == NW2


def p3idle():
    a.label("L_p3idle")
    p3_addr2()
    a("s_waitcnt lgkmcnt(0)")
    a.vm = []
    a.lg = []
    for k in range(NW2):
        emit(w2_dma(k))
    a.wait(vm="all")
    for k in range(NW2A):
        emit(w2_read(k))
    a.wait(lg="all")
    a(f"s_mul_i32 {S_T1}, {S_J}, {5*48}")
    a(f"s_mul_i32 {S_T2}, {S_W}, 12")
    a(f"s_add_u32 {S_T1}, {S_T1}, {S_T2}")
    a(f"s_lshl_b32 {S_T1}, {S_T1}, 10")
    a(f"s_add_u32 {S_T1}, {S_T1}, {U_BASE}")
    a("v_mov_b32 v60, 0")
    a.label("L_p3poll")
    a(f"buffer_load_dword v61, v60, {sWS}, {S_T1} offen sc1")
    a("s_waitcnt vmcnt(0)")
    a.vm = []
    a("v_cmp_eq_u32 vcc, -1, v61")
    a("s_cbranch_vccz L_p3join")
    a(f"s_sub_u32 {S_RETRY}, {S_RETRY}, 1")
    a("s_cbranch_scc1 L_exit")
    a("s_sleep 8")
    a("s_branch L_p3poll")


late.append(p3idle)

V_B2 = "v18"
V_OW, V_OR, OUTA = "v19", "v20", 21
US = 32
R4 = 132


def p4_addr():
    a(f"s_lshl_b32 {S_T1}, {S_TB}, 2")
    a(f"s_add_u32 {S_T1}, {S_T1}, {S_W}")
    a(f"s_lshl_b32 {S_T2}, {S_T1}, 5")
    a(f"v_lshlrev_b32 v104, 1, {V_T16}")
    a(f"v_add_u32 v104, {S_T2}, v104")
    a(f"global_load_ushort {V_B2}, v104, s[22:23]", tag="b2")
    a(f"s_mul_i32 {S_T1}, {S_J}, {5*48}")
    a(f"s_mul_i32 {S_T2}, {S_W}, 12")
    a(f"s_add_u32 {S_T1}, {S_T1}, {S_T2}")
    a(f"s_lshl_b32 {S_T1}, {S_T1}, 10")
    a(f"s_add_u32 {S_B0}, {S_T1}, {U_BASE}")
    a(f"v_mul_u32_u24 v104, 160, {V_T16}")
    a(f"v_lshl_add_u32 v104, {V_G}, 3, v104")
    a(f"v_add_u32 {V_OW}, {S_LW}, v104")
    a(f"v_add_u32 {V_OR}, {S_LW}, {V_L16}")
    for i in range(3):
        a(f"v_add_u32 v104, {64*i}, v0")
        a("v_mul_u32_u24 v105, 6554, v104")
        a("v_lshrrev_b32 v105, 16, v105")
        a("v_mul_u32_u24 v105, 1120, v105")
        a(f"v_lshl_add_u32 v{OUTA+i}, v104, 4, v105")


a.wait(vm=("w2", NW2 - 1))
fill = [x for k in range(NW2A, NW2) for x in w2_read(k)]
fill = weave(w2q[:4 * NW2A], fill, 32 // (4 * NW2A) if NW2A else 0)
emit(fill)
w2q = w2q[4 * NW2A:]
a.wait(lg="all")
NW2C = opt("w2c", 2)
rest = weave(w2q[:4 * NW2C], capture(p4_addr), 5)
emit(rest)
w2q = w2q[4 * NW2C:]


def u_loads(bt, st=S_T1):
    ct, qt = bt >> 2, bt & 3
    L = []
    for i in range(3):
        k = 3 * qt + i
        g = []
        if i == 0:
            g.append(f"s_add_u32 {st}, {S_B0}, {(ct*48+k)*1024}")
        g.append((f"buffer_load_dwordx4 {vr(US+12*(bt%6)+4*i,4)}, {V_L16}, {sWS}, {st} offen offset:{i*1024} sc1", ("u", bt)))
        L.append(g)
    return L


a.wait(vm="upub")
stamp("uack")
PRE4 = 5
emit(u_loads(0) + u_loads(1))
emit(w2q)
nrd = NW2 + NW2A + NW2C
a.wait(vm=("w2", nrd - 1))
for k in range(NW2, nrd):
    emit(w2_read(k))
for bt in range(2, PRE4):
    emit(u_loads(bt))
a("s_barrier")


def acc4(ct, b):
    return ("v", H + 4 * ct) if b == 0 else ("a", 12 * ct + 4 * (b - 1))


def r4_write(ct, b):
    return (f"ds_write_b128 v{RW+b-1}, {rr(acc4(ct,b),4)} offset:{ct*1024}", "r4w")


def r4_read(ct, b):
    return (f"ds_read_b128 {vr(R4+12*ct+4*(b-1),4)}, {V_RIN} offset:{(b-1)*5120+ct*1024}", ("r4r", ct))


def u_check(bt):
    return [lambda: a.wait(vm=("u", bt))] + check_parts([US + 12 * (bt % 6) + 4 * i for i in range(3)], 28, u_loads(bt, S_RT), f"u{bt}")


emit(u_check(0))
stamp("u0")
for bt in range(20):
    ct, qt = bt >> 2, bt & 3
    ck = u_check(bt + 1) if bt < 19 else None
    extra = []
    if bt == 2:
        for k in range(nrd, 12):
            emit(w2_read(k))
    if qt == 0 and ct > 0:
        extra = [[]] * 5 + [[r4_write(ct - 1, b)] for b in range(1, 4)]
    if bt == 18:
        a.wait(lg="all")
        a("s_barrier")
        extra = [[r4_read(c, b)] for c in range(4) for b in range(1, 4)]
    nxt = u_loads(bt + PRE4) if bt + PRE4 < 20 else []
    n = 0
    for i in range(3):
        k = 3 * qt + i
        if ct == 0:
            a.wait(lg=("w2f", k))
        for b in (1, 2, 3, 0):
            d = rr(acc4(ct, b), 4)
            c = d if (k or b == 0) else "0"
            a(f"v_mfma_f32_16x16x32_bf16 {d}, {vr(US+12*(bt%6)+4*i,4)}, {rr(w2reg(k),4,4*b)}, {c}")
            if b == 1 and nxt:
                emit(nxt.pop(0))
            if n < len(extra):
                emit(extra[n])
            if ck and n == 9:
                emit(ck[:-1])
            if ck and n == 11:
                emit(ck[-1:])
            n += 1


def fin(ct):
    r = R4 + 12 * ct
    o = H + 4 * ct
    for p in range(2):
        a(f"v_pk_add_f32 {vr(r+2*p,2)}, {vr(r+2*p,2)}, {vr(r+4+2*p,2)}")
        a(f"v_pk_add_f32 {vr(o+2*p,2)}, {vr(o+2*p,2)}, {vr(r+8+2*p,2)}")
        a(f"v_pk_add_f32 {vr(r+2*p,2)}, {vr(r+2*p,2)}, v[28:29]")
    for p in range(2):
        a(f"v_pk_add_f32 {vr(o+2*p,2)}, {vr(o+2*p,2)}, {vr(r+2*p,2)}")
    a(f"v_cvt_pk_bf16_f32 v{o}, v{o}, v{o+1}")
    a(f"v_cvt_pk_bf16_f32 v{o+1}, v{o+2}, v{o+3}")
    a(f"ds_write_b64 {V_OW}, {vr(o,2)} offset:{32*ct}", tag="ow")


a(f"v_lshlrev_b32 v28, 16, {V_B2}")
a(f"v_lshlrev_b32 v29, 16, {V_B2}")
a.wait(lg=("r4r", 0))
fin(0)
for b in range(1, 4):
    emit([r4_write(4, b)])
a.wait(lg=("r4r", 3))
fin(1)
a.wait(lg="r4w")
a("s_barrier")
for b in range(1, 4):
    emit([r4_read(4, b)])
fin(2)
fin(3)
a.wait(lg=("r4r", 4))
fin(4)
for i in range(3):
    a(f"ds_read_b128 {vr(32+4*i,4)}, {V_OR} offset:{1024*i}", tag=("or", i))
for i in range(3):
    a.wait(lg=("or", i))
    if i == 2:
        a("s_mov_b32 exec_hi, 0")
    a(f"buffer_store_dwordx4 {vr(32+4*i,4)}, v{OUTA+i}, {sOUT}, {S_XO} offen {opt('outfl', '')}")
if STAMP:
    a("s_mov_b32 exec_hi, -1")
    stamp("outst")
    a.wait(vm="all")
    stamp("end")
    a(f"v_writelane_b32 {V_ST}, {S_RETRY}, 31")
    a(f"s_lshl_b32 {S_T0}, s2, 2")
    a(f"s_add_u32 {S_T0}, {S_T0}, {S_W}")
    a(f"s_lshl_b32 {S_T0}, {S_T0}, 8")
    a(f"s_add_u32 {S_T0}, {S_T0}, {STAMP_BASE}")
    a("v_lshlrev_b32 v60, 2, v0")
    a(f"buffer_store_dword {V_ST}, v60, {sWS}, {S_T0} offen")
    if opt("encode", ""):
        ni, nj, cyc = (opt("encode", "") + ",0").split(",")[:3]
        i, j = stamp_names.index(ni) + 32 * int(cyc), stamp_names.index(nj) + 32 * int(cyc)
        a(f"s_cmp_lg_u32 s2, {opt('encwg', 40)}")
        a("s_cbranch_scc1 L_exit")
        a(f"v_readlane_b32 s10, {V_ST}, {i}")
        a(f"v_readlane_b32 s11, {V_ST}, {j}")
        a("s_nop 4")
        a("s_sub_u32 s10, s11, s10")
        if not int(cyc):
            a("s_mul_i32 s10, s10, 10")
        a("s_min_u32 s10, s10, 200000")
        a.label("L_enc")
        a("s_memrealtime s[12:13]")
        a("s_waitcnt lgkmcnt(0)")
        a("s_sub_u32 s11, s12, s96")
        a("s_cmp_lt_u32 s11, s10")
        a("s_cbranch_scc1 L_enc")
a.label("L_exit")
a("s_endpgm")
for f in late:
    f()
a.label("L_end")

body = a.finish(verbose="--vpad" in ARGS)
hdr = open(f"cdna_kernels/{NAME}.s.ref").read().split("; Override launch")[0]
src = hdr + f"""; One persistent launch: 256 workgroups (one per CU) x 4 waves; phases hand data over through d_ws.
; @launch grid=(256,1,1) block=(256,1,1) lds=163840
.amdgcn_target "amdgcn-amd-amdhsa--gfx950"
.text
.globl {NAME}_kernel
.p2align 8
.type {NAME}_kernel,@function
.set CODE_TOUCH_MAX, L_exit - {NAME}_kernel
{NAME}_kernel:
{body}
.section .rodata,"a"
.p2align 6
.amdhsa_kernel {NAME}_kernel
  .amdhsa_next_free_vgpr 512
  .amdhsa_next_free_sgpr 102
  .amdhsa_accum_offset 256
  .amdhsa_group_segment_fixed_size 0
  .amdhsa_kernarg_size 104
  .amdhsa_user_sgpr_count 2
  .amdhsa_user_sgpr_kernarg_segment_ptr 1
  .amdhsa_system_sgpr_workgroup_id_x 1
  .amdhsa_float_denorm_mode_32 3
.end_amdhsa_kernel
"""
open(OUT, "w").write(src)
if STAMP:
    open(OUT + ".stamps", "w").write(" ".join(stamp_names))
print("wrote", OUT, "instructions", sum(1 for i in a.ins if i.mn), "nops added", a.nops_added)
```
